```python
import torch

def _softmax(x, axis=-1):
    return torch.softmax(x, dim=axis)

def _gelu(x):
    return torch.nn.functional.gelu(x, approximate='tanh')

def _silu(x):
    return torch.nn.functional.silu(x)

def _sigmoid(x):
    return torch.sigmoid(x)

def _layernorm(x, axis=-1, eps=1e-05):
    m = x.mean(dim=axis, keepdim=True)
    v = x.var(dim=axis, keepdim=True, unbiased=False)
    return (x - m) / torch.sqrt(v + eps)

def _scatter_add(tgt, idx, src, axis=0):
    return tgt.clone().index_add_(axis, idx, src)

def _segment_sum(src, seg, n):
    out = torch.zeros((n,) + src.shape[1:], dtype=src.dtype)
    return out.index_add_(0, seg, src)

def _pad(x, pw):
    flat = tuple((v for pair in reversed(pw) for v in pair))
    return torch.nn.functional.pad(x, flat)
kernel_name = 'adaLN_cond__ssm_conv_s4d__mixer_channel_mlp__prompt'

def setup_inputs():

    _w = lambda a: (lambda t: t.to(torch.bfloat16) if t.is_floating_point() else t)(torch.as_tensor(a))

    def _A_setup():
        Bsz, L, D, N = (1, 2048, 576, 128)
        return {'u': _w((lambda *s: torch.randn(*s, dtype=torch.bfloat16) * 0.05)(Bsz, L, D)), 'log_A_real': _w((lambda *s: torch.randn(*s, dtype=torch.bfloat16) * 3.2)(D, N) * 0.5), 'A_imag': _w((lambda *s: torch.randn(*s, dtype=torch.bfloat16) * 0.05)(D, N) * 3.14), 'C_real': _w((lambda *s: torch.randn(*s, dtype=torch.bfloat16) * 0.2)(D, N) / N ** 0.5), 'C_imag': _w((lambda *s: torch.randn(*s, dtype=torch.bfloat16) * 0.2)(D, N) / N ** 0.5), 'log_dt': _w((lambda *s: torch.randn(*s, dtype=torch.bfloat16) * 0.05)(D) * 0.5 - 4.0), 'D_skip': _w((lambda *s: torch.randn(*s, dtype=torch.bfloat16) * 0.05)(D))}
    _A_in = _A_setup()

    def _B_setup():
        B, S, D, F = (1, 2048, 576, 4608)
        return {'x': _w((lambda *s: torch.randn(*s, dtype=torch.bfloat16) * 0.05)(B, S, D)), 'w1': _w((lambda *s: torch.randn(*s, dtype=torch.bfloat16) * 3.2)(D, F) * D ** (-0.5)), 'b1': _w((lambda *s: torch.randn(*s, dtype=torch.bfloat16) * 1.6)(F)), 'w2': _w((lambda *s: torch.randn(*s, dtype=torch.bfloat16) * 1.6)(F, D) * F ** (-0.5)), 'b2': _w((lambda *s: torch.randn(*s, dtype=torch.bfloat16) * 1.6)(D))}
    _B_in = _B_setup()
    return {'A_u': _A_in['u'], 'A_log_A_real': _A_in['log_A_real'], 'A_A_imag': _A_in['A_imag'], 'A_C_real': _A_in['C_real'], 'A_C_imag': _A_in['C_imag'], 'A_log_dt': _A_in['log_dt'], 'A_D_skip': _A_in['D_skip'], 'B_x': _B_in['x'], 'B_w1': _B_in['w1'], 'B_b1': _B_in['b1'], 'B_w2': _B_in['w2'], 'B_b2': _B_in['b2'], 'c': _w((lambda *s: torch.randn(*s, dtype=torch.bfloat16) * 0.2)(1, 576) * 8.0), 'w_mod': _w((lambda *s: torch.randn(*s, dtype=torch.bfloat16) * 0.2)(576, 6 * 576) * 576 ** (-0.5) * 8.0)}

def reference(A_u, A_log_A_real, A_A_imag, A_C_real, A_C_imag, A_log_dt, A_D_skip, B_x, B_w1, B_b1, B_w2, B_b2, c, w_mod):

    def _A_ref(u, log_A_real, A_imag, C_real, C_imag, log_dt, D_skip):
        L = u.shape[1]
        dt = torch.exp(log_dt)
        A = -torch.exp(log_A_real) + 1j * A_imag
        C = (C_real + 1j * C_imag) * dt[:, None]
        pos = (lambda x, dt: x.to(dt))(torch.arange(L), log_dt.dtype)
        P = torch.exp((A * dt[:, None])[:, :, None] * pos[None, None, :])
        K = 2.0 * torch.einsum('dn,dnl->dl', C, P).real
        L2 = 2 * L
        u_t = (lambda x, *d: x.permute(*d))(u, 0, 2, 1)
        Kf = (lambda x, *a, **k: torch.fft.rfft(x.float(), *a, **k))(K, L2)
        Uf = (lambda x, *a, **k: torch.fft.rfft(x.float(), *a, **k))(u_t, L2)
        y = (lambda x, *a, **k: torch.fft.irfft(x, *a, **k).to(torch.bfloat16))(Uf * Kf[None, :, :], L2)[:, :, :L]
        y = (lambda x, *d: x.permute(*d))(y, 0, 2, 1)
        return y + u * D_skip[None, None, :]

    def _B_ref(x, w1, b1, w2, b2):
        y = _layernorm(x, axis=-1)
        h = _gelu(torch.einsum('bsd,df->bsf', y, w1) + b1)
        return torch.einsum('bsf,fd->bsd', h, w2) + b2
    x = A_u
    mod = (_silu(c) @ w_mod).reshape(c.shape[0], 6, 1, -1)
    sa, ca, ga, sb, cb, gb = (mod[:, 0].clone(), mod[:, 1].clone(), mod[:, 2].clone(), mod[:, 3].clone(), mod[:, 4].clone(), mod[:, 5].clone())
    h = _layernorm(x, axis=-1) * (1 + ca) + sa
    x = x + ga * _A_ref(h, A_log_A_real, A_A_imag, A_C_real, A_C_imag, A_log_dt, A_D_skip)
    h = _layernorm(x, axis=-1) * (1 + cb) + sb
    x = x + gb * _B_ref(h, B_w1, B_b1, B_w2, B_b2)
    return x
```

```python
import re

class Asm:
    def __init__(self):
        self.lines = []
    def __call__(self, *ss):
        for s in ss:
            for l in s.split('\n'):
                l = l.strip()
                if l:
                    self.lines.append(l)
    def label(self, n):
        self.lines.append(n + ':')
    def text(self):
        out = []
        for l in self.lines:
            out.append(l if (l.endswith(':') or l.startswith('.') or l.startswith(';')) else '    ' + l)
        return '\n'.join(out) + '\n'

TRANS = ('v_exp_f32', 'v_log_f32', 'v_rcp_f32', 'v_rsq_f32', 'v_sqrt_f32', 'v_sin_f32', 'v_cos_f32', 'v_rcp_iflag_f32')
_reg = re.compile(r'^(-|abs\()?([vas])(\d+)\)?$')
_rng = re.compile(r'^(-)?([vas])\[(\d+):(\d+)\]$')

def regs_of(op):
    op = op.strip()
    op = op.replace('|', '')
    m = _rng.match(op)
    if m:
        return [(m.group(2), i) for i in range(int(m.group(3)), int(m.group(4)) + 1)]
    m = _reg.match(op)
    if m:
        return [(m.group(2), int(m.group(3)))]
    if op == 'vcc':
        return [('s', 'vcc')]
    if op == 'exec':
        return [('s', 'exec')]
    if op == 'm0':
        return [('s', 'm0')]
    return []

class Ins:
    __slots__ = ('text', 'op', 'kind', 'w', 'r', 'ws', 'passes', 'srcC', 'srcAB', 'trans', 'dpp', 'wide_store', 'lds_dma', 'sw', 'sr', 'store_data')
    def __init__(self, text):
        self.text = text
        t = text.split(';')[0].strip()
        parts = t.split(None, 1)
        op = parts[0]
        self.op = op
        rest = parts[1] if len(parts) > 1 else ''
        mm = re.search(r'\s(offen|idxen|offset|lds|sc0|sc1|nt|quad_perm|row_|wave_|op_sel|neg_|clamp|bank_mask|bound_ctrl|dst_sel|src0_sel|src1_sel|dst_unused|off$)', ' ' + rest)
        last_mods = ''
        if mm:
            last_mods = (' ' + rest)[mm.start():].strip()
            rest = (' ' + rest)[:mm.start()].strip()
        ops = [x.strip() for x in rest.split(',')] if rest else []
        mods = last_mods
        self.w, self.r = [], []
        self.ws = 1
        self.passes = 0
        self.srcC, self.srcAB = [], []
        self.trans = False
        self.dpp = ('quad_perm' in mods or 'row_' in mods or 'wave_' in mods)
        self.wide_store = False
        self.lds_dma = False
        self.store_data = []
        R = [regs_of(o) for o in ops]
        if op == 's_nop':
            self.kind = 'nop'; self.ws = int(ops[0], 0) + 1
        elif op.startswith('v_mfma'):
            self.kind = 'mfma'
            self.passes = 8 if '32x32' in op else 4
            self.w = R[0]; self.srcAB = R[1] + R[2]; self.srcC = R[3]; self.r = self.srcAB + self.srcC
        elif op.startswith('v_'):
            self.kind = 'valu'
            base = op.replace('_e32', '').replace('_e64', '').replace('_dpp', '').replace('_sdwa', '')
            self.trans = base in TRANS
            if base.startswith('v_cmp'):
                self.w = R[0]; self.r = sum(R[1:], [])
            elif base.startswith('v_permlane') and 'swap' in base:
                self.w = R[0] + R[1]; self.r = R[0] + R[1]
            elif base in ('v_add_co_u32', 'v_sub_co_u32', 'v_addc_co_u32', 'v_subb_co_u32', 'v_subrev_co_u32'):
                self.w = R[0] + R[1]; self.r = sum(R[2:], [])
            else:
                self.w = R[0]; self.r = sum(R[1:], [])
                if base.startswith('v_fmac') or base.startswith('v_dot2c') or base.startswith('v_pk_fmac') or 'd16' in base:
                    self.r = self.r + R[0]
                if base == 'v_cndmask_b32' and len(ops) == 3:
                    self.r = self.r + [('s', 'vcc')]
                if self.dpp:
                    self.r = self.r + R[0]
        elif op.startswith('buffer_') or op.startswith('global_') or op.startswith('ds_'):
            self.kind = 'ds' if op.startswith('ds_') else 'vmem'
            allr = sum(R, [])
            if ' lds' in (' ' + mods) or op.startswith('global_load_lds'):
                self.lds_dma = True
                self.r = allr + [('s', 'm0')]
            elif 'load' in op or op.startswith('ds_read') or op.startswith('ds_bpermute') or op.startswith('ds_swizzle') or op.startswith('ds_permute'):
                self.w = R[0]; self.r = sum(R[1:], [])
            elif op.startswith('buffer_store') or op.startswith('buffer_atomic'):
                self.r = allr; self.store_data = R[0]
                self.wide_store = 'x4' in op or 'x3' in op
            elif op.startswith('global_store') or op.startswith('global_atomic'):
                self.r = allr; self.store_data = R[1] if len(R) > 1 else []
                self.wide_store = 'x4' in op or 'x3' in op
            else:
                self.r = allr
        elif op.startswith('s_'):
            self.kind = 'salu'
            if op.startswith('s_cmp') or op.startswith('s_cbranch') or op in ('s_branch', 's_waitcnt', 's_barrier', 's_endpgm', 's_setprio', 's_sleep'):
                self.r = sum(R, [])
            elif 'saveexec' in op:
                self.w = R[0] + [('s', 'exec')]; self.r = sum(R[1:], [])
            else:
                self.w = R[0] if R else []; self.r = sum(R[1:], [])
        else:
            raise ValueError('unknown instruction: ' + text)

def _ov(a, b):
    return bool(set(a) & set(b))

def need(p, c):
    n = 0
    vw = [x for x in p.w if x[0] in 'va']
    sw = [x for x in p.w if x[0] == 's']
    if p.kind == 'valu':
        if c.kind == 'mfma' and _ov(vw, c.r): n = max(n, 2)
        if p.trans and c.kind == 'valu' and not c.trans and _ov(vw, c.r): n = max(n, 1)
        if p.trans and c.kind == 'valu' and c.trans and _ov(vw, c.r): n = max(n, 1)
        if c.kind == 'valu' and c.dpp and _ov(vw, c.r): n = max(n, 2)
        if c.op.startswith('v_permlane') and _ov(vw, c.r): n = max(n, 2)
        if (c.op.startswith('v_readlane') or c.op.startswith('v_readfirstlane')) and _ov(vw, c.r): n = max(n, 1)
        if sw:
            if c.kind == 'vmem' and _ov(sw, c.r): n = max(n, 5)
            if c.kind == 'valu' and _ov(sw, c.r): n = max(n, 4 if (c.op.startswith('v_readlane') or c.op.startswith('v_writelane')) else 2)
            if c.kind == 'salu' and _ov(sw, c.r): n = max(n, 4)
        if p.op.startswith('v_dot') and c.op != p.op and (_ov(vw, c.r) or _ov(vw, c.w)): n = max(n, 3)
        if 'sdwa' in p.text or 'op_sel' in p.text:
            if c.kind == 'valu' and _ov(vw, c.r): n = max(n, 1)
    if p.kind == 'mfma':
        big = p.passes == 8
        if c.kind == 'mfma':
            if _ov(p.w, c.srcAB): n = max(n, 12 if big else 8)
            if _ov(p.w, c.srcC) and not (p.w == c.srcC and p.passes == c.passes): n = max(n, 10 if big else 6)
            if _ov(p.w, c.w) and not (p.w == c.w and _ov(p.w, c.srcC)) and not _ov(p.w, c.srcC): n = max(n, 12 if big else 8)
        elif c.kind in ('valu', 'vmem', 'ds'):
            if _ov(p.w, c.r) or _ov(p.w, c.w): n = max(n, 12 if big else 8)
            if c.kind == 'valu' and _ov(p.srcC, c.w): n = max(n, 7 if big else 3)
    if p.kind == 'vmem' and p.wide_store:
        if c.kind == 'valu' and _ov(p.store_data, c.w): n = max(n, 2)
        elif c.kind in ('vmem', 'ds', 'mfma') and _ov(p.store_data, c.w): n = max(n, 1)
    if p.kind == 'salu':
        if ('s', 'm0') in p.w and c.lds_dma: n = max(n, 1)
        if ('s', 'exec') in p.w and c.kind == 'valu' and c.dpp: n = max(n, 1)
    return n

WINDOW = 22

def check_seq(seq, start=0, boundary=None):
    errs = []
    for j in range(len(seq)):
        c = seq[j]
        if boundary is not None and j < boundary: continue
        dist = 0
        i = j - 1
        while i >= 0 and dist < WINDOW:
            p = seq[i]
            if boundary is None or i < boundary:
                n = need(p, c)
                if n > dist:
                    errs.append(f'hazard: need {n} have {dist}: [{p.text}] -> [{c.text}]')
            dist += p.ws
            i -= 1
    return errs

def check(lines):
    ins, labels = [], {}
    for l in lines:
        l = l.strip()
        if not l or l.startswith(';') or l.startswith('.'):
            continue
        if l.endswith(':'):
            labels[l[:-1]] = len(ins); continue
        ins.append(Ins(l))
    errs = []
    seg = []
    for k, x in enumerate(ins):
        seg.append(x)
        if x.op in ('s_branch', 's_endpgm'):
            errs += check_seq(seg); seg = []
    errs += check_seq(seg)
    for k, x in enumerate(ins):
        if x.op.startswith('s_cbranch') or x.op == 's_branch':
            tgt = x.text.split()[1]
            if tgt in labels:
                t = labels[tgt]
                pre = ins[max(0, k - WINDOW):k + 1]
                post = ins[t:t + WINDOW]
                errs += check_seq(pre + post, boundary=len(pre))
    return errs

def kernel_header(name):
    return f'.globl {name}\n.p2align 8\n.type {name},@function\n{name}:\n'

def kernel_desc(name, vgpr, sgpr, accum):
    return (f'.p2align 6\n.amdhsa_kernel {name}\n  .amdhsa_next_free_vgpr {vgpr}\n  .amdhsa_next_free_sgpr {sgpr}\n'
            f'  .amdhsa_accum_offset {accum}\n  .amdhsa_group_segment_fixed_size 0\n  .amdhsa_kernarg_size 136\n'
            f'  .amdhsa_user_sgpr_count 2\n  .amdhsa_user_sgpr_kernarg_segment_ptr 1\n  .amdhsa_system_sgpr_workgroup_id_x 1\n'
            f'  .amdhsa_float_denorm_mode_32 3\n.end_amdhsa_kernel\n')
```

```python
import struct
def f2h(x): return '0x%08x' % struct.unpack('<I', struct.pack('<f', x))[0]

def allreduce32(e, v, t):
    for m in ('quad_perm:[1,0,3,2]', 'quad_perm:[2,3,0,1]', 'row_half_mirror', 'row_mirror'):
        e(f'v_add_f32_dpp v{v}, v{v}, v{v} {m} row_mask:0xf bank_mask:0xf')
    e(f'v_mov_b32 v{t}, v{v}')
    e(f'v_permlane16_swap_b32 v{v}, v{t}')
    e(f'v_add_f32 v{v}, v{v}, v{t}')

def allreduce16(e, v):
    for m in ('quad_perm:[1,0,3,2]', 'quad_perm:[2,3,0,1]', 'row_half_mirror', 'row_mirror'):
        e(f'v_add_f32_dpp v{v}, v{v}, v{v} {m} row_mask:0xf bank_mask:0xf')

def lo(dst, src): return f'v_lshlrev_b32 v{dst}, 16, v{src}'
def hi(dst, src): return f'v_and_b32 v{dst}, 0xffff0000, v{src}'
```

```python
from asmlib import Ins, need, WINDOW

class Em:
    def __init__(self):
        self.lines = []
        self.hist = []
        self.vm = []
        self.lg = []
        self.nops = 0
    def raw(self, s):
        self.lines.append(s)
    def label(self, n):
        self.lines.append(n + ':')
    def comment(self, s):
        self.lines.append('; ' + s)
    def __call__(self, *texts, vm=None, lg=None):
        for text in texts:
            for t in text.split('\n'):
                t = t.strip()
                if t:
                    self._one(t, vm, lg)
    def required(self, text):
        c = Ins(text)
        dist, req = 0, 0
        for p in reversed(self.hist):
            if dist >= WINDOW: break
            n = need(p, c)
            if n - dist > req: req = n - dist
            dist += p.ws
        return req
    def _one(self, t, vm, lg):
        if t.endswith(':') or t.startswith('.') or t.startswith(';'):
            self.lines.append(t); return
        req = self.required(t)
        if req > 0:
            self.nops += req
            nop = f's_nop {req - 1}'
            self.lines.append(nop); self.hist.append(Ins(nop))
        c = Ins(t)
        self.lines.append(t); self.hist.append(c)
        if len(self.hist) > 4 * WINDOW: self.hist = self.hist[-2 * WINDOW:]
        if c.kind == 'vmem': self.vm.append(vm)
        if c.kind == 'ds': self.lg.append(lg)
    def wait_vm(self, tag):
        idx = [i for i, x in enumerate(self.vm) if x == tag]
        if not idx: return
        k = len(self.vm) - 1 - idx[-1]
        assert k <= 63, k
        self(f's_waitcnt vmcnt({k})')
        self.vm = self.vm[idx[-1] + 1:]
    def wait_lg(self, tag):
        idx = [i for i, x in enumerate(self.lg) if x == tag]
        if not idx: return
        k = len(self.lg) - 1 - idx[-1]
        assert k <= 15, k
        self(f's_waitcnt lgkmcnt({k})')
        self.lg = self.lg[idx[-1] + 1:]
    def wait_all(self, vm=True, lg=True):
        parts = []
        if vm: parts.append('vmcnt(0)'); self.vm = []
        if lg: parts.append('lgkmcnt(0)'); self.lg = []
        self('s_waitcnt ' + ' '.join(parts))
    def srd(self, s, lo, hi, nbytes):
        self(f's_mov_b32 s{s}, s{lo}', f's_and_b32 s{s+1}, s{hi}, 0xffff', f's_mov_b32 s{s+2}, {nbytes:#x}', f's_mov_b32 s{s+3}, 0x20000')

def cost(text):
    op = text.split()[0]
    if op in ('v_exp_f32', 'v_rcp_f32', 'v_log_f32', 'v_rsq_f32', 'v_sqrt_f32', 'v_sin_f32', 'v_cos_f32'): return 8
    if op.startswith('ds_write_b128'): return 8
    return 4
```

```python
import numpy as np
from emit import Em
import layout as Lo
from common import f2h, allreduce16, lo, hi

NAME = 'k1_prep_kernel'
N_W1, N_MOD, N_LN, N_KG = 216, 108, 128, 576
B_MOD, B_LN, B_KG = N_W1, N_W1 + N_MOD, N_W1 + N_MOD + N_LN
GRID = B_KG + N_KG
LDS_BYTES = 24576
LOG2E = 1.4426950408889634

def bf16_round_int(j):
    if j < 256: return j
    s = 1 << (j.bit_length() - 8)
    q, r = divmod(j, s)
    if r * 2 > s or (r * 2 == s and (q & 1)): q += 1
    return q * s

BETA = list(range(16)) + [512, 516, 520, 524, 1024, 1032, 1536, 1544, 1552]
def t_index(pos):
    if pos < 512: return pos >> 4, pos & 15
    if pos < 1024: return (pos - 512) >> 4, 16 + ((pos >> 2) & 3)
    if pos < 1536: return (pos - 1024) >> 4, 20 + ((pos >> 3) & 1)
    if pos < 2048: return (pos - 1536) >> 4, 22 + ((pos >> 3) & 1)
    return 31, 24
def expand_table():
    t = []
    for n in range(2048):
        a, b = t_index(bf16_round_int(2047 - n))
        assert 16 * a + BETA[b] == bf16_round_int(2047 - n)
        t.append(2 * (b * 32 + a))
    return t

def build(prefetch_from=None, prefetch_bytes=0):
    e = Em()
    e.label(NAME)
    e(f's_cmp_ge_u32 s2, {GRID}', 's_cbranch_scc1 K1_END')
    e(f's_load_dwordx2 s[4:5], s[0:1], {Lo.KA["ws"]}')
    e('v_lshrrev_b32 v1, 6, v0', 'v_and_b32 v2, 63, v0')
    e('v_readfirstlane_b32 s20, v1')
    if prefetch_from:
        nch = prefetch_bytes // 4096
        e(f's_cmp_ge_u32 s2, {8*nch}', 's_cbranch_scc1 K1_NOPF')
        e('s_getpc_b64 s[30:31]')
        e.label('K1_PC')
        e(f's_add_u32 s30, s30, {prefetch_from}-K1_PC', 's_addc_u32 s31, s31, 0')
        e('s_lshr_b32 s16, s2, 3', 's_lshl_b32 s16, s16, 12', 's_add_u32 s30, s30, s16', 's_addc_u32 s31, s31, 0')
        e('v_lshlrev_b32 v3, 4, v0', 'v_mov_b32 v5, s31', 'v_add_co_u32 v4, vcc, s30, v3', 'v_addc_co_u32 v5, vcc, 0, v5, vcc')
        e('global_load_dwordx4 v[60:63], v[4:5], off')
        e.label('K1_NOPF')
        e.vm = []
    e(f's_cmp_ge_u32 s2, {B_KG}', 's_cbranch_scc1 K1_KG')
    e(f's_cmp_ge_u32 s2, {B_LN}', 's_cbranch_scc1 K1_LN')
    e(f's_cmp_ge_u32 s2, {B_MOD}', 's_cbranch_scc1 K1_MOD')
    e(f's_load_dwordx2 s[6:7], s[0:1], {Lo.KA["w1"]}')
    e('s_and_b32 s21, s2, 7', 's_lshr_b32 s22, s2, 3', 's_mul_hi_u32 s23, s22, 0x55555556', 's_mul_i32 s24, s23, 3', 's_sub_u32 s24, s22, s24')
    e('v_lshrrev_b32 v3, 3, v2', 'v_mul_u32_u24 v3, 9216, v3', 'v_and_b32 v4, 7, v2', 'v_lshlrev_b32 v4, 4, v4', 'v_add_u32 v3, v3, v4')
    e('s_mul_i32 s16, s24, 192', 's_mul_i32 s17, s20, 48', 's_add_u32 s16, s16, s17', 's_mul_i32 s16, s16, 9216',
      's_mul_i32 s17, s21, 1152', 's_add_u32 s16, s16, s17', 's_lshl_b32 s17, s23, 7', 's_add_u32 s16, s16, s17', 's_mul_i32 s17, s20, 6144')
    e('s_waitcnt lgkmcnt(0)')
    e.srd(8, 4, 5, Lo.WS_END)
    e.srd(12, 6, 7, Lo.F * Lo.D * 2)
    for q in range(6):
        e('s_mov_b32 m0, s17')
        e('buffer_load_dwordx4 v3, s[12:15], s16 offen lds', vm='w')
        if q < 5: e(f's_add_u32 s16, s16, {8*9216}', 's_add_u32 s17, s17, 1024')
    e('v_lshrrev_b32 v4, 5, v2', 'v_lshlrev_b32 v4, 3, v4', 'v_bfe_u32 v5, v2, 2, 2', 'v_add_u32 v4, v4, v5', 'v_lshlrev_b32 v4, 7, v4',
      'v_bfe_u32 v5, v2, 4, 1', 'v_lshlrev_b32 v5, 5, v5', 'v_add_u32 v4, v4, v5', 'v_and_b32 v5, 3, v2', 'v_lshlrev_b32 v5, 3, v5', 'v_add_u32 v4, v4, v5')
    e('s_and_b32 s25, s20, 1', 's_lshr_b32 s26, s20, 1', 's_lshl_b32 s16, s25, 6', 's_mul_i32 s17, s26, 12288', 's_add_u32 s16, s16, s17', 'v_add_u32 v4, s16, v4')
    e('s_mul_i32 s16, s21, 18', 's_lshl_b32 s17, s23, 1', 's_add_u32 s16, s16, s17', 's_add_u32 s16, s16, s25', 's_mul_i32 s16, s16, 36',
      's_mul_i32 s17, s24, 12', 's_add_u32 s16, s16, s17', 's_mul_i32 s17, s26, 6', 's_add_u32 s16, s16, s17', 's_lshl_b32 s16, s16, 10', f's_add_u32 s16, s16, {Lo.W1F:#x}')
    e('v_lshlrev_b32 v5, 4, v2')
    e('s_waitcnt vmcnt(0)', 's_barrier')
    e.vm = []
    for q in range(6):
        e(f'ds_read_b64_tr_b16 v[{16+4*q}:{17+4*q}], v4 offset:{2048*q}', lg=('t', q))
        e(f'ds_read_b64_tr_b16 v[{18+4*q}:{19+4*q}], v4 offset:{2048*q+512}', lg=('t', q))
    for q in range(6):
        e.wait_lg(('t', q))
        if q == 4: e('s_add_u32 s16, s16, 4096')
        e(f'buffer_store_dwordx4 v[{16+4*q}:{19+4*q}], v5, s[8:11], s16 offen offset:{(q%4)*1024}', vm='o')
    e('s_endpgm')
    e.label('K1_MOD'); e.hist = []; e.vm = []; e.lg = []
    e(f's_load_dwordx2 s[6:7], s[0:1], {Lo.KA["wmod"]}', f's_load_dwordx2 s[18:19], s[0:1], {Lo.KA["c"]}')
    e(f's_sub_u32 s21, s2, {B_MOD}', 's_mul_hi_u32 s22, s21, 0x097b425f', 's_mul_i32 s23, s22, 27', 's_sub_u32 s23, s21, s23')
    e('v_lshrrev_b32 v3, 4, v0', 'v_and_b32 v4, 15, v0')
    e('s_mul_i32 s16, s22, 144', 'v_add_u32 v5, s16, v3')
    e('v_lshlrev_b32 v6, 1, v5')
    e('v_mul_u32_u24 v5, 6912, v5', 'v_lshlrev_b32 v7, 4, v4', 'v_add_u32 v5, v5, v7', 's_lshl_b32 s16, s23, 8')
    e('s_waitcnt lgkmcnt(0)')
    e.srd(8, 4, 5, Lo.WS_END)
    e.srd(12, 6, 7, 576 * 3456 * 2)
    e.srd(24, 18, 19, 576 * 2)
    for i in range(9):
        e(f'buffer_load_ushort v{8+i}, v6, s[24:27], 0 offen offset:{32*i}', vm='c')
    for i in range(9):
        e(f'buffer_load_dwordx4 v[{20+4*i}:{23+4*i}], v5, s[12:15], s16 offen', vm=('w', i))
        if i < 8: e(f's_add_u32 s16, s16, {16*6912}')
    e.wait_vm('c')
    for i in range(9):
        r = 8 + i
        e(f'v_lshlrev_b32 v{r}, 16, v{r}', f'v_mul_f32 v17, {f2h(-LOG2E)}, v{r}', 'v_exp_f32 v17, v17', 'v_add_f32 v17, 1.0, v17', 'v_rcp_f32 v17, v17',
          f'v_mul_f32 v17, v{r}, v17', 'v_cvt_pk_bf16_f32 v17, v17, v17', f'v_lshlrev_b32 v{r}, 16, v17')
    ACC = 56
    for i in range(9):
        e.wait_vm(('w', i))
        for k in range(4):
            r = 20 + 4*i + k
            e(lo(17, r), hi(18, r))
            if i == 0: e(f'v_mul_f32 v{ACC+2*k}, v8, v17', f'v_mul_f32 v{ACC+2*k+1}, v8, v18')
            else: e(f'v_fmac_f32 v{ACC+2*k}, v{8+i}, v17', f'v_fmac_f32 v{ACC+2*k+1}, v{8+i}, v18')
    e('v_lshlrev_b32 v5, 9, v3', 'v_lshlrev_b32 v6, 5, v4', 'v_add_u32 v5, v5, v6')
    e(f'ds_write_b128 v5, v[{ACC}:{ACC+3}]', f'ds_write_b128 v5, v[{ACC+4}:{ACC+7}] offset:16')
    e('s_waitcnt lgkmcnt(0)', 's_barrier')
    e.lg = []
    e('v_cmp_gt_u32 vcc, 128, v0', 's_and_saveexec_b64 s[28:29], vcc', 's_cbranch_execz K1_END')
    e('v_lshlrev_b32 v5, 2, v0')
    for i in range(16):
        e(f'ds_read_b32 v{20+i}, v5 offset:{512*i}', lg=('r', i))
        if i == 11: e.wait_lg(('r', 3))
    e('s_waitcnt lgkmcnt(0)')
    for i in range(1, 16): e(f'v_add_f32 v20, v20, v{20+i}')
    e('s_mul_i32 s16, s22, 13824', 's_lshl_b32 s17, s23, 9', 's_add_u32 s16, s16, s17', f's_add_u32 s16, s16, {Lo.MODP:#x}')
    e('buffer_store_dword v20, v5, s[8:11], s16 offen', vm='o')
    e('s_endpgm')
    e.label('K1_LN'); e.hist = []; e.vm = []; e.lg = []
    e(f's_load_dwordx2 s[6:7], s[0:1], {Lo.KA["u"]}')
    e(f's_sub_u32 s21, s2, {B_LN}')
    e('v_lshrrev_b32 v3, 4, v0', 'v_and_b32 v4, 15, v0')
    e('s_lshl_b32 s16, s21, 4', 'v_add_u32 v5, s16, v3', 'v_mul_u32_u24 v5, 1152, v5', 'v_lshlrev_b32 v6, 3, v4', 'v_add_u32 v5, v5, v6')
    e('v_mul_u32_u24 v7, 1184, v3', 'v_add_u32 v7, v7, v6')
    e('s_waitcnt lgkmcnt(0)')
    e.srd(8, 4, 5, Lo.WS_END)
    e.srd(12, 6, 7, Lo.L * Lo.D * 2)
    X, V = 8, 26
    for i in range(9):
        e(f'buffer_load_dwordx2 v[{X+2*i}:{X+2*i+1}], v5, s[12:15], 0 offen offset:{128*i}', vm=('x', i))
    for i in range(9):
        e.wait_vm(('x', i))
        for k in range(2):
            e(lo(V+4*i+2*k, X+2*i+k), hi(V+4*i+2*k+1, X+2*i+k))
    e(f'v_add_f32 v62, v{V}, v{V+1}')
    for k in range(2, 36): e(f'v_add_f32 v62, v62, v{V+k}')
    allreduce16(e, 62)
    e(f'v_mul_f32 v62, {f2h(1/576)}, v62')
    for k in range(36): e(f'v_sub_f32 v{V+k}, v{V+k}, v62')
    e(f'v_mul_f32 v62, v{V}, v{V}')
    for k in range(1, 36): e(f'v_fmac_f32 v62, v{V+k}, v{V+k}')
    allreduce16(e, 62)
    e(f'v_mul_f32 v62, {f2h(1/576)}, v62', f'v_add_f32 v62, {f2h(1e-5)}, v62', 'v_rsq_f32 v62, v62')
    for i in range(9):
        for k in range(2):
            e(f'v_mul_f32 v63, v62, v{V+4*i+2*k}', f'v_mul_f32 v64, v62, v{V+4*i+2*k+1}', f'v_cvt_pk_bf16_f32 v{X+2*i+k}, v63, v64')
        e(f'ds_write_b64 v7, v[{X+2*i}:{X+2*i+1}] offset:{128*i}', lg='w')
    e('v_lshrrev_b32 v3, 4, v2', 'v_lshlrev_b32 v3, 2, v3', 'v_bfe_u32 v4, v2, 2, 2', 'v_add_u32 v3, v3, v4', 'v_mul_u32_u24 v3, 1184, v3',
      'v_and_b32 v4, 3, v2', 'v_lshlrev_b32 v4, 3, v4', 'v_add_u32 v3, v3, v4', 's_mul_i32 s16, s20, 288', 'v_add_u32 v3, s16, v3')
    e('v_and_b32 v4, 15, v2', 'v_lshlrev_b32 v4, 5, v4', 'v_lshrrev_b32 v5, 4, v2', 'v_lshlrev_b32 v5, 3, v5', 'v_add_u32 v4, v4, v5')
    e('s_mul_i32 s16, s21, 18432', 's_mul_i32 s17, s20, 4608', 's_add_u32 s16, s16, s17', f's_add_u32 s16, s16, {Lo.XT:#x}')
    e('s_waitcnt lgkmcnt(0)', 's_barrier')
    e.lg = []
    for q in range(9):
        e(f'ds_read_b64_tr_b16 v[{X+2*q}:{X+2*q+1}], v3 offset:{32*q}', lg=('t', q))
    for q in range(9):
        e.wait_lg(('t', q))
        if q == 8: e('s_add_u32 s16, s16, 4096')
        e(f'buffer_store_dwordx2 v[{X+2*q}:{X+2*q+1}], v4, s[8:11], s16 offen offset:{(512*q) % 4096}', vm='o')
    e('s_endpgm')
    e.label('K1_KG'); e.hist = []; e.vm = []; e.lg = []
    PAR, PRT, TT = 0, 2048, 2048 + 16384
    e(f's_load_dwordx8 s[36:43], s[0:1], {Lo.KA["logA"]}', f's_load_dwordx2 s[44:45], s[0:1], {Lo.KA["logdt"]}')
    e(f's_sub_u32 s21, s2, {B_KG}')
    e('s_getpc_b64 s[30:31]')
    e.label('K1_PC2')
    e('s_add_u32 s30, s30, K1_TABLE-K1_PC2', 's_addc_u32 s31, s31, 0')
    e('v_lshlrev_b32 v3, 4, v0', 'v_mov_b32 v5, s31', 'v_add_co_u32 v4, vcc, s30, v3', 'v_addc_co_u32 v5, vcc, 0, v5, vcc')
    e('global_load_dwordx4 v[40:43], v[4:5], off', vm='tab')
    e('v_and_b32 v4, 127, v0', 'v_lshlrev_b32 v4, 1, v4', 's_lshl_b32 s16, s21, 8')
    e('s_waitcnt lgkmcnt(0)')
    e('s_lshr_b32 s17, s21, 1', 's_lshl_b32 s17, s17, 2', 's_load_dword s22, s[44:45], s17')
    e.srd(8, 4, 5, Lo.WS_END)
    for k in range(4):
        e.srd(48 + 4*k, 36 + 2*k, 37 + 2*k, 576 * 128 * 2)
        e(f'buffer_load_ushort v{8+k}, v4, s[{48+4*k}:{51+4*k}], s16 offen', vm='p')
    e('s_waitcnt lgkmcnt(0)')
    e('s_and_b32 s17, s21, 1', 's_lshl_b32 s17, s17, 4', 's_lshr_b32 s22, s22, s17', 's_lshl_b32 s22, s22, 16')
    e(f'v_mov_b32 v5, s22', f'v_mul_f32 v5, {f2h(LOG2E)}, v5', 'v_exp_f32 v5, v5', 'v_cvt_pk_bf16_f32 v5, v5, v5', 'v_lshlrev_b32 v5, 16, v5')
    e.wait_vm('p')
    for k in range(4): e(f'v_lshlrev_b32 v{8+k}, 16, v{8+k}')
    e(f'v_mul_f32 v8, {f2h(LOG2E)}, v8', 'v_exp_f32 v8, v8', 'v_cvt_pk_bf16_f32 v8, v8, v8', 'v_lshlrev_b32 v8, 16, v8')
    e('v_mul_f32 v12, v8, v5', f'v_mul_f32 v12, {f2h(-LOG2E)}, v12')
    e('v_mul_f32 v13, v9, v5', f'v_mul_f32 v13, {f2h(1/(2*np.pi))}, v13')
    e('v_mul_f32 v14, v10, v5', 'v_mul_f32 v14, 2.0, v14', 'v_mul_f32 v15, v11, v5', 'v_mul_f32 v15, 2.0, v15')
    e('v_lshlrev_b32 v4, 3, v4')
    e('v_cmp_gt_u32 vcc, 128, v0', 's_and_saveexec_b64 s[28:29], vcc')
    e(f'ds_write_b128 v4, v[12:15] offset:{PAR}', lg='p')
    e('s_mov_b64 exec, s[28:29]')
    e('v_and_b32 v3, 31, v2', 'v_lshlrev_b32 v6, 4, v3', 'v_cvt_f32_u32 v6, v6')
    e('v_subrev_u32 v8, 16, v3', 'v_lshlrev_b32 v8, 2, v8', 'v_add_u32 v8, 512, v8')
    e('v_cmp_gt_u32 vcc, 16, v3', 'v_cndmask_b32 v7, v8, v3, vcc')
    e('v_subrev_u32 v8, 20, v3', 'v_lshlrev_b32 v8, 3, v8', 'v_add_u32 v8, 1024, v8', 'v_cmp_le_u32 vcc, 20, v3', 'v_cndmask_b32 v7, v7, v8, vcc')
    e('v_add_u32 v8, 496, v8', 'v_cmp_le_u32 vcc, 22, v3', 'v_cndmask_b32 v7, v7, v8, vcc')
    e('v_cmp_le_u32 vcc, 25, v3', 'v_mov_b32 v8, 0', 'v_cndmask_b32 v7, v7, v8, vcc')
    e('v_cvt_f32_u32 v7, v7')
    e('v_lshrrev_b32 v8, 5, v2', 'v_lshlrev_b32 v8, 6, v8', 's_lshl_b32 s16, s20, 9', 'v_add_u32 v8, s16, v8')
    ACC, PA, FA, FB = 44, 12, 28, 32
    for r in range(16): e(f'v_mov_b32 v{ACC+r}, 0')
    e('s_waitcnt lgkmcnt(0)', 's_barrier')
    e.lg = []
    e('s_mov_b32 s16, 4')
    e.label('K1_KLOOP')
    for q in range(4):
        e(f'ds_read_b128 v[{PA+4*q}:{PA+4*q+3}], v8 offset:{PAR+16*q}', lg=('p', q))
    e('v_add_u32 v8, 128, v8')
    for q in range(4):
        e.wait_lg(('p', q))
        zr, zi, cr, ci = PA+4*q, PA+4*q+1, PA+4*q+2, PA+4*q+3
        e(f'v_mul_f32 v36, v{zr}, v6', f'v_mul_f32 v37, v{zi}, v6', f'v_mul_f32 v60, v{zr}, v7', f'v_mul_f32 v61, v{zi}, v7')
        e('v_exp_f32 v36, v36', 'v_fract_f32 v37, v37', 'v_exp_f32 v60, v60', 'v_fract_f32 v61, v61')
        e('v_cos_f32 v38, v37', 'v_sin_f32 v39, v37', 'v_cos_f32 v62, v61', 'v_sin_f32 v63, v61')
        e('v_mul_f32 v38, v36, v38', 'v_mul_f32 v39, v36, v39', 'v_mul_f32 v62, v60, v62', 'v_mul_f32 v63, v60, v63')
        e(f'v_mul_f32 v36, v{cr}, v38', f'v_mul_f32 v37, v{cr}, v39')
        e(f'v_fma_f32 v36, -v{ci}, v39, v36', f'v_fma_f32 v37, v{ci}, v38, v37')
        e(f'v_cvt_pk_bf16_f32 v{FB+q}, v62, -v63', f'v_cvt_pk_bf16_f32 v{FA+q}, v36, v37')
    e(f'v_mfma_f32_32x32x16_bf16 v[{ACC}:{ACC+15}], v[{FA}:{FA+3}], v[{FB}:{FB+3}], v[{ACC}:{ACC+15}]')
    e('s_sub_u32 s16, s16, 1', 's_cmp_lg_u32 s16, 0', 's_cbranch_scc1 K1_KLOOP')
    e.lg = []
    e('v_lshlrev_b32 v3, 4, v2', 's_lshl_b32 s16, s20, 12', 'v_add_u32 v4, s16, v3')
    for q in range(4):
        e(f'ds_write_b128 v4, v[{ACC+4*q}:{ACC+4*q+3}] offset:{PRT+1024*q}', lg='w')
    e('s_lshl_b32 s16, s20, 10', 'v_add_u32 v4, s16, v3')
    e('s_waitcnt lgkmcnt(0)', 's_barrier')
    e.lg = []
    for w in range(4):
        e(f'ds_read_b128 v[{12+4*w}:{15+4*w}], v4 offset:{PRT+4096*w}', lg='r')
    e('v_and_b32 v5, 31, v2', 'v_lshlrev_b32 v5, 6, v5', 'v_lshrrev_b32 v6, 5, v2', 'v_lshlrev_b32 v6, 3, v6', 'v_add_u32 v5, v5, v6', 's_lshl_b32 s16, s20, 4', 'v_add_u32 v5, s16, v5')
    e('s_waitcnt lgkmcnt(0)')
    e.lg = []
    for k in range(4):
        e(f'v_add_f32 v{12+k}, v{12+k}, v{16+k}', f'v_add_f32 v{20+k}, v{20+k}, v{24+k}')
    for k in range(4):
        e(f'v_add_f32 v{12+k}, v{12+k}, v{20+k}')
    e('v_cvt_pk_bf16_f32 v12, v12, v13', 'v_cvt_pk_bf16_f32 v13, v14, v15')
    e(f'ds_write_b64 v5, v[12:13] offset:{TT}')
    e.wait_vm('tab')
    for k in range(4):
        e(f'v_and_b32 v{12+2*k}, 0xffff, v{40+k}', f'v_lshrrev_b32 v{13+2*k}, 16, v{40+k}')
    e('s_waitcnt lgkmcnt(0)', 's_barrier')
    e.lg = []
    for k in range(8):
        e(f'ds_read_u16 v{24+k}, v{12+k} offset:{TT}')
    e('v_lshlrev_b32 v3, 4, v0', 's_lshl_b32 s16, s21, 12', f's_add_u32 s16, s16, {Lo.KREV:#x}')
    e('s_waitcnt lgkmcnt(0)')
    for k in range(4):
        e(f'v_lshl_or_b32 v{20+k}, v{25+2*k}, 16, v{24+2*k}')
    e('buffer_store_dwordx4 v[20:23], v3, s[8:11], s16 offen', vm='o')
    e.label('K1_END')
    e('s_endpgm')
    e.raw('.p2align 6')
    e.label('K1_TABLE')
    t = expand_table()
    for i in range(0, 2048, 16):
        e.raw('.short ' + ', '.join(str(x) for x in t[i:i+16]))
    return e

if __name__ == '__main__':
    import asmlib
    e = build()
    errs = asmlib.check(e.lines)
    print('instructions', len(e.lines), 'nops', e.nops, 'hazard errors', len(errs))
    for x in errs[:20]: print(x)
```

```python
from emit import Em
import layout as Lo
from common import f2h, lo, hi

NAME = 'k2_conv_kernel'
HZ, KE, KO, WSTR = 0, 4608, 4608 + 4160, 13120
LDS_BYTES = 4 * WSTR
NCONV = 144
GRID = 288

def build():
    e = Em()
    e.label(NAME)
    e(f's_cmp_ge_u32 s2, {GRID}', 's_cbranch_scc1 K2_END')
    e(f's_load_dwordx2 s[4:5], s[0:1], {Lo.KA["ws"]}')
    e('v_lshrrev_b32 v1, 6, v0', 'v_and_b32 v2, 63, v0')
    e('v_readfirstlane_b32 s20, v1')
    e(f's_cmp_ge_u32 s2, {NCONV}', 's_cbranch_scc1 K2_W2')
    e(f's_load_dwordx2 s[6:7], s[0:1], {Lo.KA["Dskip"]}')
    e('s_lshl_b32 s21, s2, 2', 's_add_u32 s21, s21, s20')
    e(f's_mul_i32 s22, s20, {WSTR}')
    e('s_waitcnt lgkmcnt(0)')
    e.srd(8, 4, 5, Lo.WS_END)
    e('s_lshr_b32 s16, s21, 1', 's_lshl_b32 s16, s16, 2', 's_load_dword s23, s[6:7], s16')
    e('v_and_b32 v3, 3, v2', 'v_mul_u32_u24 v3, 13824, v3', 'v_lshrrev_b32 v4, 2, v2', 'v_mul_u32_u24 v5, 2304, v4', 'v_add_u32 v3, v3, v5')
    e('s_lshl_b32 s16, s21, 2', f's_add_u32 s16, s16, {Lo.MODP:#x}')
    e('buffer_load_dword v6, v3, s[8:11], s16 offen', vm='mod')
    e('v_lshrrev_b32 v3, 1, v2', 'v_mul_u32_u24 v3, 18432, v3', 'v_and_b32 v5, 1, v2', 'v_lshlrev_b32 v5, 4, v5', 'v_add_u32 v3, v3, v5')
    e('s_lshl_b32 s16, s21, 5', f's_add_u32 s16, s16, {Lo.XT:#x}')
    XR, EA, EB = 16, 32, 48
    for u in range(4):
        e(f'buffer_load_dwordx4 v[{XR+4*u}:{XR+4*u+3}], v3, s[8:11], s16 offen', vm='x')
        if u < 3: e('s_add_u32 s16, s16, 589824')
    e('v_lshlrev_b32 v7, 4, v2')
    e('s_lshl_b32 s16, s21, 12', f's_add_u32 s16, s16, {Lo.KREV:#x}')
    for u in range(4):
        e(f'buffer_load_dwordx4 v[{EA+4*u}:{EA+4*u+3}], v7, s[8:11], s16 offen offset:{1024*u}', vm='k')
        e(f'buffer_load_dwordx4 v[{EB+4*u}:{EB+4*u+3}], v7, s[8:11], s16 offen offset:{1024*u+4}', vm='k')
    e('v_mov_b32 v64, 0', 'v_mov_b32 v65, 0', 'v_mov_b32 v66, 0', 'v_mov_b32 v67, 0')
    e('v_add_u32 v8, s22, v7')
    e('s_mov_b32 exec_hi, 0')
    e(f'ds_write_b128 v8, v[64:67] offset:{HZ}', lg='z')
    e('s_mov_b64 exec, 3')
    e(f'ds_write_b128 v8, v[64:67] offset:{KE+4096}', lg='z')
    e(f'ds_write_b128 v8, v[64:67] offset:{KO+4096}', lg='z')
    e('s_mov_b64 exec, -1')
    e.wait_vm('mod')
    e('v_add_f32_dpp v6, v6, v6 quad_perm:[1,0,3,2] row_mask:0xf bank_mask:0xf', 'v_add_f32_dpp v6, v6, v6 quad_perm:[2,3,0,1] row_mask:0xf bank_mask:0xf')
    e('v_cvt_pk_bf16_f32 v6, v6, v6', 'v_lshlrev_b32 v9, 16, v6')
    e('v_add_f32 v10, 1.0, v9', 'v_cvt_pk_bf16_f32 v10, v10, v10')
    e('v_lshlrev_b32 v11, 16, v10')
    e('v_readlane_b32 s24, v9, 0', 'v_readlane_b32 s25, v11, 4')
    e('v_mul_u32_u24 v5, 1152, v4', 's_lshl_b32 s16, s21, 1', f's_add_u32 s16, s16, {Lo.MODB:#x}')
    e('s_mov_b64 exec, 0x111111')
    e('buffer_store_short v6, v5, s[8:11], s16 offen', vm='ms')
    e('s_mov_b64 exec, -1')
    e('v_cmp_eq_u32 vcc, 16, v2', 'v_cndmask_b32 v12, v6, v10, vcc')
    e('v_subrev_u32 v13, 2, v4', 'v_lshlrev_b32 v13, 3, v13', 's_mov_b32 s17, 0x040800', 'v_lshrrev_b32 v13, v13, s17', 'v_and_b32 v13, 0xff, v13')
    e('s_lshr_b32 s16, s21, 1', 's_lshl_b32 s16, s16, 4', 's_and_b32 s17, s21, 1', 's_lshl_b32 s17, s17, 1', 's_add_u32 s16, s16, s17', f's_add_u32 s16, s16, {Lo.MOD3:#x}')
    e('s_mov_b64 exec, 0x11100')
    e('buffer_store_short v12, v13, s[8:11], s16 offen', vm='ms')
    e('s_mov_b64 exec, -1')
    e('v_mov_b32 v14, s24')
    e.wait_vm('x')
    for u in range(4):
        for k in range(4):
            r = XR + 4*u + k
            e(lo(10, r), hi(11, r), 'v_fma_f32 v10, v10, s25, v14', 'v_fma_f32 v11, v11, s25, v14', f'v_cvt_pk_bf16_f32 v{r}, v10, v11')
        e(f'ds_write_b128 v8, v[{XR+4*u}:{XR+4*u+3}] offset:{HZ+512+1024*u}', lg='h')
    e.wait_vm('k')
    e('v_cmp_eq_u32 vcc, 63, v2', 'v_mov_b32 v10, -1', 'v_mov_b32 v11, 0xffff', 'v_cndmask_b32 v10, v10, v11, vcc')
    for u in range(4):
        e(f'ds_write_b128 v8, v[{EA+4*u}:{EA+4*u+3}] offset:{KE+1024*u}', lg='k')
        for k in range(4):
            e(f'v_alignbit_b32 v{EB+4*u+k}, v{EB+4*u+k}, v{EA+4*u+k}, 16')
        if u == 3: e(f'v_and_b32 v{EB+15}, v{EB+15}, v10')
        e(f'ds_write_b128 v8, v[{EB+4*u}:{EB+4*u+3}] offset:{KO+1024*u}', lg='k')
    e('v_and_b32 v3, 15, v2', 'v_lshrrev_b32 v4, 4, v2')
    VB, VA, VE = 5, 10, 9
    e(f'v_lshlrev_b32 v{VB}, 5, v3', 'v_lshlrev_b32 v6, 4, v4', f'v_add_u32 v{VB}, v{VB}, v6', f's_add_u32 s16, s22, {HZ+480}', f'v_add_u32 v{VB}, s16, v{VB}')
    e(f'v_lshlrev_b32 v{VE}, 5, v3', 'v_lshlrev_b32 v14, 3, v4', f'v_add_u32 v{VE}, v{VE}, v14', f'v_add_u32 v{VE}, s22, v{VE}')
    e('v_sub_u32 v14, 2031, v3', 'v_lshrrev_b32 v14, 1, v14', 'v_lshlrev_b32 v14, 2, v14', 'v_add_u32 v14, v14, v6')
    e('v_and_b32 v15, 1, v3', f'v_mul_u32_u24 v15, {KO-KE}, v15', f'v_sub_u32 v15, {KO}, v15', 'v_add_u32 v14, v14, v15', 'v_add_u32 v14, s22, v14')
    for q in range(4):
        e(f'v_subrev_u32 v{VA+q}, {512*(2*q+1)}, v14')
    ACC = 16
    SA, SB = [48, 112], [80, 144]
    for t in range(32): e(f'v_mov_b32 v{ACC+t}, 0')
    def reads(st):
        out = []
        for p in range(8):
            out.append(f'ds_read_b128 v[{SB[st]+4*p}:{SB[st]+4*p+3}], v{VB} offset:{512*p}')
            q, odd = p >> 1, p & 1
            o = 0 if odd else 128
            out.append(f'ds_read2_b32 v[{SA[st]+4*p}:{SA[st]+4*p+1}], v{VA+q} offset0:{o} offset1:{o+1}')
            out.append(f'ds_read2_b32 v[{SA[st]+4*p+2}:{SA[st]+4*p+3}], v{VA+q} offset0:{o+2} offset1:{o+3}')
        return out
    def step():
        return [f'v_subrev_u32 v{VB}, 64, v{VB}'] + [f'v_subrev_u32 v{VA+q}, 64, v{VA+q}' for q in range(4)]
    e('s_waitcnt lgkmcnt(0)')
    e.lg = []
    for x in reads(0): e(x)
    for x in step(): e(x)
    e('s_mov_b32 s16, 4')
    e.label('K2_LOOP')
    for st in range(2):
        e('s_waitcnt lgkmcnt(0)')
        rd = reads(st ^ 1)
        n = 0
        for i in range(8):
            for t in range(i, 8):
                e(f'v_mfma_f32_16x16x32_bf16 v[{ACC+4*t}:{ACC+4*t+3}], v[{SA[st]+4*i}:{SA[st]+4*i+3}], v[{SB[st]+4*(t-i)}:{SB[st]+4*(t-i)+3}], v[{ACC+4*t}:{ACC+4*t+3}]')
                n += 1
                if rd and n >= 2: e(rd.pop(0))
        for x in step(): e(x)
    e('s_sub_u32 s16, s16, 1', 's_cmp_lg_u32 s16, 0', 's_cbranch_scc1 K2_LOOP')
    e.lg = []
    e('s_waitcnt lgkmcnt(0)')
    e('s_and_b32 s16, s21, 1', 's_lshl_b32 s16, s16, 4', 's_lshr_b32 s23, s23, s16', 's_lshl_b32 s23, s23, 16')
    for t in range(8):
        e(f'ds_read_b64 v[{48+2*t}:{49+2*t}], v{VE} offset:{HZ+512+512*t}', lg=('h', t))
    for t in range(8):
        e.wait_lg(('h', t))
        r = 48 + 2*t
        e(lo(10, r), hi(11, r), lo(12, r+1), hi(13, r+1))
        for k in range(4):
            e(f'v_fma_f32 v{10+k}, v{10+k}, s23, v{ACC+4*t+k}')
        e(f'v_cvt_pk_bf16_f32 v{r}, v10, v11', f'v_cvt_pk_bf16_f32 v{r+1}, v12, v13')
        e(f'ds_write_b64 v{VE}, v[{r}:{r+1}] offset:{KE+512*t}', lg='aw')
    e('s_waitcnt lgkmcnt(0)', 's_barrier')
    e('v_bfe_u32 v10, v2, 2, 2', f'v_mul_u32_u24 v10, {WSTR}, v10', 'v_lshrrev_b32 v11, 4, v2', 'v_lshlrev_b32 v11, 5, v11', 'v_add_u32 v10, v10, v11',
      'v_and_b32 v11, 3, v2', 'v_lshlrev_b32 v11, 3, v11', 'v_add_u32 v10, v10, v11', 's_lshl_b32 s16, s20, 10', 'v_add_u32 v10, s16, v10')
    e('v_lshlrev_b32 v11, 3, v2', 's_lshl_b32 s16, s2, 14', 's_lshl_b32 s17, s20, 12', 's_add_u32 s16, s16, s17', f's_add_u32 s16, s16, {Lo.AT4:#x}')
    e.lg = []
    for q in range(8):
        e(f'ds_read_b64_tr_b16 v[{16+2*q}:{17+2*q}], v10 offset:{KE+128*q}', lg=('t', q))
    for q in range(8):
        e.wait_lg(('t', q))
        e(f'buffer_store_dwordx2 v[{16+2*q}:{17+2*q}], v11, s[8:11], s16 offen offset:{512*q}', vm='o')
    e('s_endpgm')
    e.label('K2_W2')
    e.hist = []; e.vm = []; e.lg = []
    e(f's_load_dwordx2 s[6:7], s[0:1], {Lo.KA["w2"]}')
    e(f's_sub_u32 s21, s2, {NCONV}', 's_and_b32 s22, s21, 7', 's_lshr_b32 s23, s21, 3')
    e('s_mul_i32 s16, s22, 18', 's_add_u32 s16, s16, s23', 's_mul_i32 s16, s16, 36864', 's_mul_i32 s17, s20, 9216', 's_add_u32 s16, s16, s17')
    e('v_lshlrev_b32 v3, 4, v2')
    e('s_waitcnt lgkmcnt(0)')
    e.srd(8, 4, 5, Lo.WS_END)
    e.srd(12, 6, 7, Lo.F * Lo.D * 2)
    for j in range(9):
        if j % 4 == 0: e('s_mov_b32 m0, s17')
        e(f'buffer_load_dwordx4 v3, s[12:15], s16 offen offset:{(j%4)*1024} lds', vm='w')
        if j % 4 == 3: e('s_add_u32 s16, s16, 4096', 's_add_u32 s17, s17, 4096')
    e('v_lshrrev_b32 v4, 5, v2', 'v_lshlrev_b32 v4, 2, v4', 'v_bfe_u32 v5, v2, 2, 2', 'v_add_u32 v4, v4, v5', 'v_mul_u32_u24 v4, 1152, v4',
      'v_bfe_u32 v5, v2, 4, 1', 'v_lshlrev_b32 v5, 5, v5', 'v_add_u32 v4, v4, v5', 'v_and_b32 v5, 3, v2', 'v_lshlrev_b32 v5, 3, v5', 'v_add_u32 v4, v4, v5')
    e('s_and_b32 s24, s20, 1', 's_lshr_b32 s25, s20, 1', 's_mul_i32 s16, s24, 18432', 's_mul_i32 s17, s25, 576', 's_add_u32 s16, s16, s17', 'v_add_u32 v4, s16, v4')
    e('s_mul_i32 s16, s22, 18', 's_mul_i32 s17, s25, 9', 's_add_u32 s16, s16, s17', 's_mul_i32 s16, s16, 36', 's_lshl_b32 s17, s23, 1', 's_add_u32 s16, s16, s17',
      's_add_u32 s16, s16, s24', 's_lshl_b32 s16, s16, 10', f's_add_u32 s16, s16, {Lo.W2F:#x}')
    e('s_waitcnt vmcnt(0)', 's_barrier')
    e.vm = []
    for q in range(9):
        e(f'ds_read_b64_tr_b16 v[{16+4*q}:{17+4*q}], v4 offset:{64*q}', lg=('t', q))
        e(f'ds_read_b64_tr_b16 v[{18+4*q}:{19+4*q}], v4 offset:{9216+64*q}', lg=('t', q))
        if q >= 4:
            e.wait_lg(('t', q-4))
            e(f'buffer_store_dwordx4 v[{16+4*(q-4)}:{19+4*(q-4)}], v3, s[8:11], s16 offen', vm='o')
            e('s_add_u32 s16, s16, 36864')
    for q in range(5, 9):
        e.wait_lg(('t', q))
        e(f'buffer_store_dwordx4 v[{16+4*q}:{19+4*q}], v3, s[8:11], s16 offen', vm='o')
        e('s_add_u32 s16, s16, 36864')
    e.label('K2_END')
    e('s_endpgm')
    return e

if __name__ == '__main__':
    import asmlib
    e = build()
    errs = asmlib.check(e.lines)
    print('instructions', len(e.lines), 'nops', e.nops, 'hazard errors', len(errs))
    for x in errs[:20]: print(x)
```

```python
from emit import Em
import layout as Lo
from common import f2h, allreduce32, lo, hi

NAME = 'k3_ln2_kernel'

def build():
    e = Em()
    e.label(NAME)
    e('s_cmp_ge_u32 s2, 256', 's_cbranch_scc1 K3_END')
    e(f's_load_dwordx2 s[4:5], s[0:1], {Lo.KA["ws"]}', f's_load_dwordx2 s[6:7], s[0:1], {Lo.KA["u"]}')
    X, A, M, V, P = 16, 26, 36, 72, 92
    e('v_lshrrev_b32 v1, 5, v0', 's_lshl_b32 s16, s2, 3', 'v_add_u32 v1, s16, v1', 'v_and_b32 v2, 31, v0')
    e('v_mul_u32_u24 v3, 1152, v1', 'v_lshlrev_b32 v4, 2, v2', 'v_add_u32 v3, v3, v4')
    e('v_lshrrev_b32 v5, 1, v2', 'v_lshlrev_b32 v5, 14, v5', 'v_lshlrev_b32 v6, 3, v1', 'v_add_u32 v5, v5, v6',
      'v_and_b32 v6, 1, v2', 'v_lshlrev_b32 v6, 2, v6', 'v_add_u32 v5, v5, v6')
    e('v_lshlrev_b32 v6, 4, v2')
    e('v_lshrrev_b32 v7, 5, v1', 'v_mul_u32_u24 v7, 36864, v7', 'v_lshrrev_b32 v8, 3, v2', 'v_lshlrev_b32 v8, 10, v8', 'v_add_u32 v7, v7, v8',
      'v_bfe_u32 v8, v2, 2, 1', 'v_lshlrev_b32 v8, 9, v8', 'v_add_u32 v7, v7, v8', 'v_and_b32 v8, 31, v1', 'v_lshlrev_b32 v8, 4, v8', 'v_add_u32 v7, v7, v8',
      'v_and_b32 v8, 3, v2', 'v_lshlrev_b32 v8, 2, v8', 'v_add_u32 v7, v7, v8')
    e('s_waitcnt lgkmcnt(0)')
    e.srd(8, 4, 5, Lo.WS_END)
    e.srd(12, 6, 7, Lo.L * Lo.D * 2)
    e(f's_mov_b32 s17, {Lo.AT4:#x}', f's_mov_b32 s18, {Lo.MOD3:#x}')
    for i in range(9):
        e(f'buffer_load_dword v{A+i}, v5, s[8:11], s17 offen', vm=('in', i))
        e(f'buffer_load_dword v{X+i}, v3, s[12:15], 0 offen offset:{128*i}', vm=('in', i))
        e(f'buffer_load_dwordx3 v[{M+4*i}:{M+4*i+2}], v6, s[8:11], s18 offen offset:{(512*i) % 4096}', vm=('in', i))
        if i < 8: e('s_add_u32 s17, s17, 0x40000')
        if i == 7: e('s_add_u32 s18, s18, 4096')
    e(f's_mov_b32 s17, {Lo.X2:#x}')
    for i in range(9):
        e.wait_vm(('in', i))
        e(lo(9, X+i), hi(10, X+i), lo(11, A+i), hi(12, A+i), lo(13, M+4*i), hi(14, M+4*i))
        e('v_fma_f32 v9, v13, v11, v9', 'v_fma_f32 v10, v14, v12, v10')
        e(f'v_cvt_pk_bf16_f32 v{P+i}, v9, v10')
        e(f'buffer_store_dword v{P+i}, v3, s[8:11], s17 offen offset:{128*i}', vm='x2')
        e(lo(V+2*i, P+i), hi(V+2*i+1, P+i))
    def layernorm_center():
        e(f'v_add_f32 v9, v{V}, v{V+1}')
        for k in range(2, 18): e(f'v_add_f32 v9, v9, v{V+k}')
        allreduce32(e, 9, 10)
        e(f'v_mul_f32 v9, {f2h(1/576)}, v9')
        for k in range(18): e(f'v_sub_f32 v{V+k}, v{V+k}, v9')
        e(f'v_mul_f32 v9, v{V}, v{V}')
        for k in range(1, 18): e(f'v_fmac_f32 v9, v{V+k}, v{V+k}')
        allreduce32(e, 9, 10)
        e(f'v_mul_f32 v9, {f2h(1/576)}, v9', f'v_add_f32 v9, {f2h(1e-5)}, v9', 'v_rsq_f32 v9, v9')
    layernorm_center()
    for i in range(9):
        e(lo(10, M+4*i+1), hi(11, M+4*i+1), lo(12, M+4*i+2), hi(13, M+4*i+2))
        e('v_mul_f32 v10, v9, v10', 'v_mul_f32 v11, v9, v11')
        e(f'v_fma_f32 v{V+2*i}, v{V+2*i}, v10, v12', f'v_fma_f32 v{V+2*i+1}, v{V+2*i+1}, v11, v13')
    layernorm_center()
    e(f's_mov_b32 s17, {Lo.YF:#x}')
    for i in range(9):
        e(f'v_mul_f32 v10, v9, v{V+2*i}', f'v_mul_f32 v11, v9, v{V+2*i+1}', f'v_cvt_pk_bf16_f32 v{P+i}, v10, v11')
        e(f'buffer_store_dword v{P+i}, v7, s[8:11], s17 offen', vm='y')
        if i < 8: e('s_add_u32 s17, s17, 4096')
    e.label('K3_END')
    e('s_endpgm')
    return e

if __name__ == '__main__':
    import asmlib
    e = build()
    errs = asmlib.check(e.lines)
    print('instructions', len(e.lines), 'nops', e.nops, 'hazard errors', len(errs))
    for x in errs[:20]: print(x)
```

```python
from emit import Em, cost
import layout as Lo

NAME = 'k4_mlp_kernel'
LDS_Y, LDS_H, LDS_B = 0, 73728, 147456
LDS_BYTES = LDS_B + 18 * 128
C0 = -2.302208198
C1 = C0 * 0.044715

import struct
def f2h(x): return '0x%08x' % struct.unpack('<I', struct.pack('<f', x))[0]

V_L16, V_RD, V_HW, V_HWH, V_BR, V_BRH, V_C0 = 1, 2, 4, 6, 7, 8, 9
V_BIAS, V_HP, V_T, V_YX, V_ACC, V_RING = 16, 32, 40, 48, 80, 144
S_WS, S_B1 = 8, 12
S_W, S_A, S_SEG1H, S_SEG2, S_SEG2H, S_P0, S_P1, S_PH, S_Y, S_T0, S_T1 = 20, 21, 22, 23, 24, 25, 26, 27, 28, 29, 30

def yreg(i):
    return f'a[{4*i}:{4*i+3}]' if i < 64 else f'v[{V_YX+4*(i-64)}:{V_YX+4*(i-64)+3}]'
def acc(buf, slot):
    b = V_ACC + 32 * buf + 16 * slot
    return b
def rng(b, n): return f'v[{b}:{b+n-1}]'

def build(NA=24, store_mod='', G=2, stamps=False):
    e = Em()
    e.label(NAME)
    nst = [0]
    def stamp():
        if stamps:
            e(f's_memtime s[{50+2*nst[0]}:{51+2*nst[0]}]'); nst[0] += 1
    stamp()
    e('s_cmp_ge_u32 s2, 256', 's_cbranch_scc1 K4_END')
    e(f's_load_dwordx2 s[4:5], s[0:1], {Lo.KA["ws"]}', f's_load_dwordx2 s[6:7], s[0:1], {Lo.KA["b1"]}')
    e('v_lshrrev_b32 v10, 6, v0', 'v_and_b32 v11, 63, v0')
    e(f'v_readfirstlane_b32 s{S_W}, v10')
    e(f'v_lshlrev_b32 v{V_L16}, 4, v11')
    e('s_and_b32 s16, s2, 7', 's_lshr_b32 s17, s2, 3')
    e(f's_and_b32 s18, s{S_W}, 1', f's_lshr_b32 s19, s{S_W}, 1')
    e('s_mul_i32 s31, s16, 18')
    e(f's_lshl_b32 s32, s{S_W}, 2', 's_add_u32 s32, s32, s31', 's_mul_i32 s32, s32, 36864')
    e('s_add_u32 s33, s31, s19', 's_add_u32 s33, s33, 16', 's_mul_i32 s33, s33, 36864')
    e(f's_add_u32 s{S_A}, s32, {Lo.W1F:#x}', f's_add_u32 s{S_SEG1H}, s33, {Lo.W1F:#x}')
    e(f's_add_u32 s{S_SEG2}, s32, {Lo.W2F:#x}', f's_add_u32 s{S_SEG2H}, s33, {Lo.W2F:#x}')
    e('s_lshl_b32 s34, s17, 3', 's_add_u32 s34, s34, s16', 's_mul_i32 s34, s34, 73728', f's_add_u32 s34, s34, {Lo.PART:#x}')
    e(f's_lshl_b32 s35, s{S_W}, 14', 's_add_u32 s35, s35, s34')
    e('s_lshl_b32 s36, s18, 11', f's_add_u32 s{S_P0}, s35, s36', 's_xor_b32 s36, s36, 2048', f's_add_u32 s{S_P1}, s35, s36')
    e('s_add_u32 s35, s19, 16', 's_lshl_b32 s35, s35, 12', 's_add_u32 s35, s35, s34', 's_lshl_b32 s36, s18, 11', f's_add_u32 s{S_PH}, s35, s36')
    e('s_mul_i32 s35, s17, 73728', f's_mul_i32 s36, s{S_W}, 18432', 's_add_u32 s35, s35, s36', f's_add_u32 s{S_Y}, s35, {Lo.YF:#x}')
    e(f's_add_u32 s{S_T0}, s36, {LDS_Y}')
    e('s_mul_i32 s35, s18, 36864', 's_xor_b32 s36, s18, 1', 's_mul_i32 s36, s36, 36864')
    e(f'v_add_u32 v{V_RD}, s35, v{V_L16}', f'v_add_u32 v{V_RD+1}, s36, v{V_L16}')
    e(f's_lshl_b32 s37, s{S_W}, 13', f's_add_u32 s37, s37, {LDS_H}')
    e(f'v_add_u32 v{V_HW}, s37, v{V_RD}', f'v_add_u32 v{V_HW+1}, s37, v{V_RD+1}')
    e('s_lshl_b32 s37, s19, 11', f's_add_u32 s37, s37, {LDS_H + 32768}', f'v_add_u32 v{V_HWH}, s37, v{V_RD}')
    e('v_lshrrev_b32 v12, 5, v11', 'v_lshlrev_b32 v12, 6, v12')
    e(f's_lshl_b32 s37, s{S_W}, 9', f's_add_u32 s37, s37, {LDS_B}', f'v_add_u32 v{V_BR}, s37, v12')
    e('s_lshl_b32 s37, s19, 7', f's_add_u32 s37, s37, {LDS_B + 2048}', f'v_add_u32 v{V_BRH}, s37, v12')
    e(f'v_mov_b32 v{V_C0}, {f2h(C0)}')
    e('s_waitcnt lgkmcnt(0)')
    e.srd(S_WS, 4, 5, Lo.WS_END)
    e.srd(S_B1, 6, 7, Lo.F * 2)
    e('s_mul_i32 s37, s16, 1152', 'v_lshlrev_b32 v13, 3, v0', 'v_add_u32 v13, s37, v13')
    e(f'buffer_load_dwordx2 v[14:15], v13, s[{S_B1}:{S_B1+3}], 0 offen', vm='bias')
    for j in range(18):
        if j % 4 == 0:
            e(f's_mov_b32 m0, s{S_T0}')
            if j: pass
        e(f'buffer_load_dwordx4 v{V_L16}, s[{S_WS}:{S_WS+3}], s{S_Y} offen offset:{(j%4)*1024} lds', vm='y')
        if j % 4 == 3:
            e(f's_add_u32 s{S_Y}, s{S_Y}, 4096', f's_add_u32 s{S_T0}, s{S_T0}, 4096')
    NF = 360
    st = dict(next=0)
    def load_frag():
        n = st['next']
        if n >= NF: return
        if n == 144: e(f's_mov_b32 s{S_A}, s{S_SEG1H}')
        if n == 180: e(f's_mov_b32 s{S_A}, s{S_SEG2}')
        if n == 324: e(f's_mov_b32 s{S_A}, s{S_SEG2H}')
        r = V_RING + 4 * (n % NA)
        e(f'buffer_load_dwordx4 {rng(r,4)}, v{V_L16}, s[{S_WS}:{S_WS+3}], s{S_A} offen offset:{(n%4)*1024}', vm=('f', n))
        if n % 4 == 3: e(f's_add_u32 s{S_A}, s{S_A}, 4096')
        st['next'] = n + 1
    for _ in range(NA): load_frag()
    e('v_lshrrev_b32 v10, 3, v0', 'v_lshlrev_b32 v10, 7, v10', 'v_and_b32 v11, 1, v0', 'v_lshlrev_b32 v11, 6, v11', 'v_add_u32 v10, v10, v11',
      'v_bfe_u32 v11, v0, 1, 2', 'v_lshlrev_b32 v11, 4, v11', 'v_add_u32 v10, v10, v11', f'v_add_u32 v10, {LDS_B}, v10')
    e.wait_vm('bias')
    e('v_lshlrev_b32 v40, 16, v14', 'v_and_b32 v41, 0xffff0000, v14', 'v_lshlrev_b32 v42, 16, v15', 'v_and_b32 v43, 0xffff0000, v15')
    e('v_cmp_gt_u32 vcc, 144, v0', 's_and_saveexec_b64 s[38:39], vcc')
    e('ds_write_b128 v10, v[40:43]', lg='bw')
    e('s_mov_b64 exec, s[38:39]')
    e.wait_vm('y')
    e.wait_all(vm=False, lg=True)
    e('s_barrier')
    stamp()

    def bias_reads(addr, off):
        return [f'ds_read_b128 {rng(V_BIAS+4*c,4)}, v{addr} offset:{off+16*c}' for c in range(4)]

    def gelu_stream(buf, slots, wr):
        out = []
        for sl in slots:
            x0 = acc(buf, sl)
            for g in range(4):
                xs = [x0 + 4*g + j for j in range(4)]
                ts = [V_T + j for j in range(4)]
                for j in range(4): out.append(f'v_mul_f32 v{ts[j]}, v{xs[j]}, v{xs[j]}')
                for j in range(4): out.append(f'v_fmamk_f32 v{ts[j]}, v{ts[j]}, {f2h(C1)}, v{V_C0}')
                for j in range(4): out.append(f'v_mul_f32 v{ts[j]}, v{xs[j]}, v{ts[j]}')
                for j in range(4): out.append(f'v_exp_f32 v{ts[j]}, v{ts[j]}')
                for j in range(4): out.append(f'v_add_f32 v{ts[j]}, 1.0, v{ts[j]}')
                for j in range(4): out.append(f'v_rcp_f32 v{ts[j]}, v{ts[j]}')
                for j in range(4): out.append(f'v_mul_f32 v{ts[j]}, v{xs[j]}, v{ts[j]}')
                hp = V_HP + 4 * (g >> 1) + 2 * (g & 1)
                out.append(f'v_cvt_pk_bf16_f32 v{hp}, v{ts[0]}, v{ts[1]}')
                out.append(f'v_cvt_pk_bf16_f32 v{hp+1}, v{ts[2]}, v{ts[3]}')
                if g & 1:
                    a, off = wr(sl, g >> 1)
                    out.append(f'ds_write_b128 v{a}, {rng(V_HP + 4*(g>>1), 4)} offset:{off}')
        return out

    def store_stream(buf, slots, sreg):
        out = []
        for sl in slots:
            x0 = acc(buf, sl)
            for q in range(2):
                hp = V_HP + 4 * q
                for j in range(4):
                    out.append(f'v_cvt_pk_bf16_f32 v{hp+j}, v{x0+8*q+2*j}, v{x0+8*q+2*j+1}')
                out.append(f'buffer_store_dwordx4 {rng(hp,4)}, v{V_L16}, s[{S_WS}:{S_WS+3}], s{sreg(sl)} offen offset:{q*1024}{store_mod}')
        return out

    fr = dict(n=0)
    def tile(buf, slots, fill, first_c, jit=None, pre=None, delay=3):
        nm = 36 * len(slots)
        fill = list(fill)
        total = sum(cost(x) for x in fill)
        done = 0
        gap = 0
        DJ = 4
        if jit:
            for ks in range(DJ):
                for sl in slots:
                    e(f'ds_read_b128 {yreg(sl*36+ks)}, v{jit+sl} offset:{ks*1024}', lg=('y', ks))
        for ks in range(36):
            n = fr['n']
            if ks % G == 0:
                e.wait_vm(('f', min(n + G - 1, NF - 1)))
            if jit:
                e.wait_lg(('y', ks))
            r = V_RING + 4 * (n % NA)
            for sl in slots:
                a = acc(buf, sl)
                c = (first_c if (ks == 0 and first_c is not None) else rng(a, 16))
                e(f'v_mfma_f32_32x32x16_bf16 {rng(a,16)}, {rng(r,4)}, {yreg(sl*36+ks)}, {c}')
                gap += 1
                if sl == slots[-1]:
                    load_frag()
                    if jit and ks + DJ < 36:
                        for s2 in slots:
                            e(f'ds_read_b128 {yreg(s2*36+ks+DJ)}, v{jit+s2} offset:{(ks+DJ)*1024}', lg=('y', ks + DJ))
                    if pre and ks == 30:
                        for x in pre: e(x, lg='bias')
                if gap >= delay:
                    target = total * (gap - delay + 1) / (nm - delay + 1 - 1)
                    while fill and (done < target):
                        x = fill.pop(0)
                        done += cost(x)
                        e(x, vm='st', lg='hw')
            fr['n'] = n + 1
        for x in fill: e(x, vm='st', lg='hw')

    zero = None
    for x in bias_reads(V_BR, 0): e(x, lg='bias')
    e.wait_lg('bias')
    bias = rng(V_BIAS, 16)
    def wr_full(i):
        return lambda sl, step: (V_HW + sl, (2*i + step) * 1024)
    tile(0, [0, 1], [], bias, jit=V_RD, pre=bias_reads(V_BR, 128))
    stamp()
    for i in range(1, 4):
        e.wait_lg('bias')
        nxt = bias_reads(V_BR, 128 * (i + 1)) if i < 3 else bias_reads(V_BRH, 0)
        tile(i & 1, [0, 1], gelu_stream((i - 1) & 1, [0, 1], wr_full(i - 1)), bias, pre=nxt)
    e.wait_lg('bias')
    tile(0, [0], gelu_stream(1, [0, 1], wr_full(3)), bias, delay=4)
    for x in gelu_stream(0, [0], lambda sl, step: (V_HWH, step * 1024)): e(x, lg='hw')
    e(f'v_add_u32 v{V_RD}, {LDS_H}, v{V_RD}', f'v_add_u32 v{V_RD+1}, {LDS_H}, v{V_RD+1}')
    e.wait_all(vm=False, lg=True)
    stamp()
    e('s_barrier')
    stamp()
    sreg = lambda sl: (S_P0 + sl)
    tile(1, [0, 1], [], '0', jit=V_RD)
    for i in range(1, 4):
        tile((i + 1) & 1, [0, 1], store_stream(i & 1, [0, 1], sreg), '0')
        e(f's_add_u32 s{S_P0}, s{S_P0}, 4096', f's_add_u32 s{S_P1}, s{S_P1}, 4096')
    tile(1, [0], store_stream(0, [0, 1], sreg), '0', delay=4)
    for x in store_stream(1, [0], lambda sl: S_PH): e(x, vm='st')
    if stamps:
        stamp()
        e('s_waitcnt vmcnt(0)')
        stamp()
        e(f's_load_dwordx2 s[4:5], s[0:1], {Lo.KA["dbg"]}', 's_waitcnt lgkmcnt(0)')
        e.srd(12, 4, 5, 256)
        e('s_cmp_ge_u32 s2, 2', 's_cbranch_scc1 K4_END')
        e('s_lshl_b32 s40, s2, 2', f's_add_u32 s40, s40, s{S_W}', 's_lshl_b32 s40, s40, 5', 'v_mov_b32 v12, s40')
        for i in range(1, nst[0]):
            e(f's_sub_u32 s41, s{50+2*i}, s50', 'v_mov_b32 v13, s41', f'buffer_store_dword v13, v12, s[12:15], 0 offen offset:{4*(i-1)}', vm='dbg')
    e.label('K4_END')
    e('s_endpgm')
    return e

if __name__ == '__main__':
    import asmlib
    e = build()
    errs = asmlib.check(e.lines)
    print('instructions', len(e.lines), 'nops', e.nops, 'hazard errors', len(errs))
    for x in errs[:20]: print(x)
```

```python
from emit import Em
import layout as Lo

NAME = 'k5_red_kernel'

def build():
    e = Em()
    e.label(NAME)
    e('s_cmp_ge_u32 s2, 576', 's_cbranch_scc1 K5_END')
    e(f's_load_dwordx2 s[4:5], s[0:1], {Lo.KA["ws"]}', f's_load_dwordx2 s[6:7], s[0:1], {Lo.KA["b2"]}', f's_load_dwordx2 s[20:21], s[0:1], {Lo.KA["out"]}')
    e('s_mul_hi_u32 s16, s2, 0x0e38e38f', 's_mul_i32 s17, s16, 18', 's_sub_u32 s17, s2, s17')
    e('v_lshlrev_b32 v1, 4, v0')
    e('s_mul_i32 s18, s16, 589824', 's_lshl_b32 s19, s17, 12', 's_add_u32 s18, s18, s19', f's_add_u32 s18, s18, {Lo.PART:#x}')
    e('v_lshrrev_b32 v2, 7, v0', 'v_lshlrev_b32 v2, 5, v2', 'v_and_b32 v3, 31, v0', 'v_add_u32 v2, v2, v3', 's_lshl_b32 s19, s16, 6', 'v_add_u32 v2, s19, v2')
    e('v_bfe_u32 v3, v0, 6, 1', 'v_lshlrev_b32 v3, 5, v3', 'v_bfe_u32 v4, v0, 5, 1', 'v_lshlrev_b32 v4, 4, v4', 'v_add_u32 v3, v3, v4', 's_lshl_b32 s19, s17, 6', 'v_add_u32 v3, s19, v3')
    e('v_mul_u32_u24 v2, 1152, v2', 'v_add_u32 v2, v2, v3')
    e('s_waitcnt lgkmcnt(0)')
    e.srd(8, 4, 5, Lo.WS_END)
    e.srd(12, 6, 7, Lo.D * 2)
    e.srd(24, 20, 21, Lo.L * Lo.D * 2)
    for s in range(8):
        e(f'buffer_load_dwordx4 v[{16+4*s}:{19+4*s}], v1, s[8:11], s18 offen', vm=('p', s))
        if s < 7: e('s_add_u32 s18, s18, 73728')
    e(f's_mov_b32 s19, {Lo.X2:#x}', f's_mov_b32 s22, {Lo.MODB + 5*576*2:#x}')
    e('buffer_load_dwordx4 v[48:51], v2, s[8:11], s19 offen', vm='x')
    e('buffer_load_dwordx4 v[52:55], v3, s[8:11], s22 offen', vm='x')
    e('buffer_load_dwordx4 v[56:59], v3, s[12:15], 0 offen', vm='x')
    for s in range(8):
        e.wait_vm(('p', s))
        for m in range(4):
            if s == 0:
                e(f'v_lshlrev_b32 v{60+2*m}, 16, v{16+m}', f'v_and_b32 v{61+2*m}, 0xffff0000, v{16+m}')
            else:
                e(f'v_lshlrev_b32 v4, 16, v{16+4*s+m}', f'v_and_b32 v5, 0xffff0000, v{16+4*s+m}')
                e(f'v_add_f32 v{60+2*m}, v{60+2*m}, v4', f'v_add_f32 v{61+2*m}, v{61+2*m}, v5')
    for j in range(4):
        e(f'v_permlane32_swap_b32 v{60+j}, v{64+j}')
    e.wait_vm('x')
    for m in range(4):
        for h in range(2):
            k = 60 + 2*m + h
            un = (lambda dst, src: f'v_lshlrev_b32 v{dst}, 16, v{src}') if h == 0 else (lambda dst, src: f'v_and_b32 v{dst}, 0xffff0000, v{src}')
            e(un(4, 56+m), un(5, 52+m), un(6, 48+m))
            e(f'v_add_f32 v{k}, v{k}, v4', f'v_fma_f32 v{k}, v{k}, v5, v6')
    for m in range(4):
        e(f'v_cvt_pk_bf16_f32 v{68+m}, v{60+2*m}, v{61+2*m}')
    e('buffer_store_dwordx4 v[68:71], v2, s[24:27], 0 offen', vm='o')
    e.label('K5_END')
    e('s_endpgm')
    return e

if __name__ == '__main__':
    import asmlib
    e = build()
    errs = asmlib.check(e.lines)
    print('instructions', len(e.lines), 'nops', e.nops, 'hazard errors', len(errs))
    for x in errs[:20]: print(x)
```

```python
L, D, N, F = 2048, 576, 128, 4608
KSPLIT = 3
WS_BYTES = 268435456
def _al(x, a=4096): return (x + a - 1) // a * a
MODP = 0
MODB = _al(MODP + KSPLIT * 3456 * 4)
MOD3 = _al(MODB + 3456 * 2)
KP = 2048
KREV = _al(MOD3 + 288 * 16)
XT = _al(KREV + D * KP * 2)
XR = _al(XT + D * L * 2)
AT4 = _al(XR + D * L * 2)
X2 = _al(AT4 + D * L * 2)
YF = _al(X2 + D * L * 2)
W1F = _al(YF + D * L * 2)
W2F = _al(W1F + D * F * 2)
PART = _al(W2F + D * F * 2)
FLG = PART + 32 * 8 * 18 * 4096
WS_END = FLG + 256 * 128
KA = dict(u=0, logA=8, Aimag=16, Cre=24, Cim=32, logdt=40, Dskip=48, Bx=56, w1=64, b1=72, w2=80, b2=88, c=96, wmod=104, out=112, dbg=120, ws=128)
```

```python
import sys, gen_all, k1_prep, k2_conv, k3_ln2, k4_mlp, k5_red
def make(k4=None, prefetch=True, stamps=False, order=(1,2,3,4,5)):
    if not prefetch or 2 not in order:
        return _make(k4, False, stamps, order, 0, 0)
    syms, size = gen_all.symbols(_make(k4, True, stamps, order, 4096, 0))
    span = size - syms[k2_conv.NAME]
    nbytes = (span + 4095) // 4096 * 4096
    return _make(k4, True, stamps, order, nbytes, nbytes - span)

def _make(k4, prefetch, stamps, order, pf_bytes, tail_pad):
    k4 = k4 or {}
    ks = {
     1: (k1_prep.NAME, k1_prep.build(prefetch_from=(k2_conv.NAME if prefetch else None), prefetch_bytes=pf_bytes), k1_prep.GRID, 256, k1_prep.LDS_BYTES, 72, 72, 72),
     2: (k2_conv.NAME, k2_conv.build(), k2_conv.GRID, 256, k2_conv.LDS_BYTES, 176, 48, 176),
     3: (k3_ln2.NAME, k3_ln2.build(), 256, 256, 0, 104, 48, 104),
     4: (k4_mlp.NAME, k4_mlp.build(stamps=stamps, **k4), 256, 256, k4_mlp.LDS_BYTES, 512, 72 if stamps else 48, 256),
     5: (k5_red.NAME, k5_red.build(), 576, 256, 0, 80, 48, 80),
    }
    return gen_all.assemble([ks[i] for i in order], tail_pad)
if __name__ == '__main__':
    open(sys.argv[1], 'w').write(make())
```

```python
import sys
import asmlib
import layout as Lo

HEADER = open('adaLN_cond__ssm_conv_s4d__mixer_channel_mlp__prompt.s.ref').read().split('; Override launch geometry')[0]

def assemble(kernels, tail_pad=0, timeline=False, cstamps=None):
    out = [HEADER.rstrip('\n')]
    for (name, e, grid, block, lds, vg, sg, ac) in kernels:
        out.append(f'; @launch kernel={name} grid=({grid},1,1) block=({block},1,1) lds={lds}')
    out.append('.amdgcn_target "amdgcn-amd-amdhsa--gfx950"')
    out.append('.text')
    seen = set()
    for (name, e, *_r) in kernels:
        if name in seen: continue
        seen.add(name)
        errs = asmlib.check(e.lines)
        assert not errs, '\n'.join(errs[:20])
        out.append(f'.globl {name}\n.p2align 8\n.type {name},@function')
        lines = list(e.lines)
        if timeline:
            grid = _r[0]
            stride = (grid + 14) // 15
            lines = instrument(name, lines, stride)
        if cstamps and name in cstamps:
            import stamps
            lines = stamps.apply(name, lines, cstamps[name])
        for l in lines:
            out.append(l if (l.endswith(':') or l.startswith('.') or l.startswith(';')) else '    ' + l)
    if tail_pad: out.append(f'.fill {tail_pad // 4}, 4, 0xbf800000')
    out.append('.section .rodata,"a"')
    seen = set()
    for (name, e, grid, block, lds, vg, sg, ac) in kernels:
        if name in seen: continue
        seen.add(name)
        if timeline or (cstamps and name in cstamps): sg = 102
        out.append(f'.p2align 6\n.amdhsa_kernel {name}\n  .amdhsa_next_free_vgpr {vg}\n  .amdhsa_next_free_sgpr {sg}\n  .amdhsa_accum_offset {ac}\n'
                   f'  .amdhsa_group_segment_fixed_size 0\n  .amdhsa_kernarg_size 136\n  .amdhsa_user_sgpr_count 2\n'
                   f'  .amdhsa_user_sgpr_kernarg_segment_ptr 1\n  .amdhsa_system_sgpr_workgroup_id_x 1\n.end_amdhsa_kernel')
    return '\n'.join(out) + '\n'

def symbols(asm):
    import subprocess, tempfile, os, re
    d = tempfile.mkdtemp()
    open(d + '/a.s', 'w').write(asm)
    r = subprocess.run(['clang', '-x', 'assembler', '-target', 'amdgcn-amd-amdhsa', '-mcpu=gfx950', '-c', d + '/a.s', '-o', d + '/a.o'], capture_output=True, text=True)
    assert r.returncode == 0, r.stderr
    t = subprocess.run(['llvm-objdump', '-t', '-h', d + '/a.o'], capture_output=True, text=True).stdout
    syms = {m.group(2): int(m.group(1), 16) for m in re.finditer(r'^([0-9a-f]{16}) .*\.text\s+[0-9a-f]+ (?:\.protected )?(\S+)$', t, re.M)}
    size = int(re.search(r'\.text\s+([0-9a-f]{8})', t).group(1), 16)
    return syms, size

TL_OFF = 0xF000000
def instrument(name, lines, stride):
    kidx = int(name[1]) if name[1].isdigit() else 0
    out = [lines[0], 's_memrealtime s[92:93]', 's_memtime s[88:89]', 's_mov_b32 s98, s2', f's_load_dwordx2 s[96:97], s[0:1], {Lo.KA["ws"]}']
    out += ['v_readfirstlane_b32 s99, v0', 's_waitcnt lgkmcnt(0)']
    last = max(i for i, l in enumerate(lines) if l == 's_endpgm')
    for i, l in enumerate(lines[1:], 1):
        if l == 's_endpgm':
            out.append(f's_branch STAMP_{name}')
            if i == last:
                out += [f'STAMP_{name}:', 's_waitcnt vmcnt(0) lgkmcnt(0)', 's_memrealtime s[94:95]', 's_memtime s[100:101]', 's_mov_b64 exec, -1',
                        's_cmp_lg_u32 s99, 0', f's_cbranch_scc1 STAMPX_{name}',
                        's_mov_b32 s84, s96', 's_and_b32 s85, s97, 0xffff', 's_mov_b32 s86, 0x10000000', 's_mov_b32 s87, 0x20000',
                        's_lshl_b32 s90, s98, 4', f's_add_u32 s90, s90, {TL_OFF + kidx * 65536}', 's_waitcnt lgkmcnt(0)',
                        'v_mov_b32 v1, s90', 'v_mov_b32 v4, s92', 'v_mov_b32 v5, s94', 'v_mov_b32 v6, s88', 'v_mov_b32 v7, s100',
                        's_mov_b64 exec, 1', 'buffer_store_dwordx4 v[4:7], v1, s[84:87], 0 offen', 's_waitcnt vmcnt(0)', f'STAMPX_{name}:', 's_endpgm']
        else:
            out.append(l)
    return out
```

```python
import numpy as np
from emit import Em
import layout as Lo
from common import f2h, allreduce16, lo, hi

NAME = 'k1_prep_kernel'
N_KG, N_LN, N_MOD, N_W1 = 576, 128, 27 * Lo.KSPLIT, 216
B_LN, B_MOD = N_KG, N_KG + N_LN
B_W1 = (B_MOD + N_MOD + 7) // 8 * 8
GRID = B_W1 + N_W1
LDS_BYTES = 4 * 64 * 144 + 2048
LOG2E = 1.4426950408889634

def bf16_round_int(j):
    if j < 256: return j
    s = 1 << (j.bit_length() - 8)
    q, r = divmod(j, s)
    if r * 2 > s or (r * 2 == s and (q & 1)): q += 1
    return q * s

BETA = list(range(16)) + [512, 516, 520, 524, 1024, 1032, 1536, 1544, 1552]
def t_index(pos):
    if pos < 512: return pos >> 4, pos & 15
    if pos < 1024: return (pos - 512) >> 4, 16 + ((pos >> 2) & 3)
    if pos < 1536: return (pos - 1024) >> 4, 20 + ((pos >> 3) & 1)
    if pos < 2048: return (pos - 1536) >> 4, 22 + ((pos >> 3) & 1)
    return 31, 24
def expand_table():
    t = []
    for n in range(2048):
        a, b = t_index(bf16_round_int(2047 - n))
        assert 16 * a + BETA[b] == bf16_round_int(2047 - n)
        t.append(2 * (b * 32 + a))
    return t

def build(prefetch_from=None, prefetch_bytes=0, R=2, sm=' sc1', wpf=False, w1m=' sc1'):
    e = Em()
    e.label(NAME)
    e(f's_cmp_ge_u32 s2, {GRID}', 's_cbranch_scc1 K1_END')
    e(f's_load_dwordx2 s[4:5], s[0:1], {Lo.KA["ws"]}')
    e('v_lshrrev_b32 v1, 6, v0', 'v_and_b32 v2, 63, v0')
    e('v_readfirstlane_b32 s20, v1')
    if prefetch_from:
        nch = prefetch_bytes // 4096
        e(f's_cmp_lt_u32 s2, {GRID - 8*nch}', 's_cbranch_scc1 K1_NOPF')
        e('s_getpc_b64 s[30:31]')
        e.label('K1_PC')
        e(f's_add_u32 s30, s30, {prefetch_from}-K1_PC', 's_addc_u32 s31, s31, 0')
        e(f's_sub_u32 s16, s2, {GRID - 8*nch}', 's_lshr_b32 s16, s16, 3', 's_lshl_b32 s16, s16, 12', 's_add_u32 s30, s30, s16', 's_addc_u32 s31, s31, 0')
        e('v_lshlrev_b32 v3, 4, v0', 'v_mov_b32 v5, s31', 'v_add_co_u32 v4, vcc, s30, v3', 'v_addc_co_u32 v5, vcc, 0, v5, vcc')
        e('global_load_dwordx4 v[68:71], v[4:5], off')
        e.label('K1_NOPF')
        e.vm = []
    e(f's_cmp_lt_u32 s2, {B_LN}', 's_cbranch_scc1 K1_KG')
    e(f's_cmp_lt_u32 s2, {B_MOD}', 's_cbranch_scc1 K1_LN')
    e(f's_cmp_ge_u32 s2, {B_W1}', 's_cbranch_scc1 K1_W1')
    e(f's_cmp_ge_u32 s2, {B_MOD + N_MOD}', 's_cbranch_scc1 K1_END')
    e.vm = []; e.lg = []
    e(f's_load_dwordx2 s[6:7], s[0:1], {Lo.KA["wmod"]}', f's_load_dwordx2 s[18:19], s[0:1], {Lo.KA["c"]}')
    e(f's_sub_u32 s21, s2, {B_MOD}', 's_mul_hi_u32 s22, s21, 0x097b425f', 's_mul_i32 s23, s22, 27', 's_sub_u32 s23, s21, s23')
    e('v_lshrrev_b32 v3, 4, v0', 'v_and_b32 v4, 15, v0')
    ROWS = 576 // Lo.KSPLIT; NI = ROWS // 16
    e(f's_mul_i32 s16, s22, {ROWS}', 'v_add_u32 v5, s16, v3')
    e('v_lshlrev_b32 v6, 1, v5')
    e('v_mul_u32_u24 v5, 6912, v5', 'v_lshlrev_b32 v7, 4, v4', 'v_add_u32 v5, v5, v7', 's_lshl_b32 s16, s23, 8')
    e('s_waitcnt lgkmcnt(0)')
    e.srd(8, 4, 5, Lo.WS_END)
    e.srd(12, 6, 7, 576 * 3456 * 2)
    e.srd(24, 18, 19, 576 * 2)
    CR, WR0 = 8, 24
    for i in range(NI):
        e(f'buffer_load_ushort v{CR+i}, v6, s[24:27], 0 offen offset:{32*i}', vm='c')
    def wreg(i): return WR0 + 4 * (i % 8)
    def wload(i):
        e(f'buffer_load_dwordx4 v[{wreg(i)}:{wreg(i)+3}], v5, s[12:15], s16 offen', vm=('w', i))
        e(f's_add_u32 s16, s16, {16*6912}')
    for i in range(min(8, NI)): wload(i)
    e.wait_vm('c')
    for i in range(NI):
        r = CR + i
        e(f'v_lshlrev_b32 v{r}, 16, v{r}', f'v_mul_f32 v21, {f2h(-LOG2E)}, v{r}', 'v_exp_f32 v21, v21', 'v_add_f32 v21, 1.0, v21', 'v_rcp_f32 v21, v21',
          f'v_mul_f32 v21, v{r}, v21', 'v_cvt_pk_bf16_f32 v21, v21, v21', f'v_lshlrev_b32 v{r}, 16, v21')
    ACC = 56
    for i in range(NI):
        e.wait_vm(('w', i))
        for k in range(4):
            r = wreg(i) + k
            e(lo(21, r), hi(22, r))
            if i == 0: e(f'v_mul_f32 v{ACC+2*k}, v{CR}, v21', f'v_mul_f32 v{ACC+2*k+1}, v{CR}, v22')
            else: e(f'v_fmac_f32 v{ACC+2*k}, v{CR+i}, v21', f'v_fmac_f32 v{ACC+2*k+1}, v{CR+i}, v22')
        if i + 8 < NI: wload(i + 8)
    e('v_lshlrev_b32 v5, 9, v3', 'v_lshlrev_b32 v6, 5, v4', 'v_add_u32 v5, v5, v6')
    e(f'ds_write_b128 v5, v[{ACC}:{ACC+3}]', f'ds_write_b128 v5, v[{ACC+4}:{ACC+7}] offset:16')
    e('s_waitcnt lgkmcnt(0)', 's_barrier')
    e.lg = []
    e('v_cmp_gt_u32 vcc, 128, v0', 's_and_saveexec_b64 s[28:29], vcc', 's_cbranch_execz K1_END')
    e('v_lshlrev_b32 v5, 2, v0')
    for i in range(16):
        e(f'ds_read_b32 v{20+i}, v5 offset:{512*i}', lg=('r', i))
        if i == 11: e.wait_lg(('r', 3))
    e('s_waitcnt lgkmcnt(0)')
    for i in range(1, 16): e(f'v_add_f32 v20, v20, v{20+i}')
    e('s_mul_i32 s16, s22, 13824', 's_lshl_b32 s17, s23, 9', 's_add_u32 s16, s16, s17', f's_add_u32 s16, s16, {Lo.MODP:#x}')
    e(f'buffer_store_dword v20, v5, s[8:11], s16 offen{sm}', vm='o')
    e('s_endpgm')
    e.label('K1_LN'); e.hist = []; e.vm = []; e.lg = []
    e(f's_load_dwordx2 s[6:7], s[0:1], {Lo.KA["u"]}')
    e(f's_sub_u32 s21, s2, {B_LN}')
    e('v_lshrrev_b32 v3, 4, v0', 'v_and_b32 v4, 15, v0')
    e('s_lshl_b32 s16, s21, 4', 'v_add_u32 v5, s16, v3', 'v_mul_u32_u24 v5, 1152, v5', 'v_lshlrev_b32 v6, 3, v4', 'v_add_u32 v5, v5, v6')
    e('v_mul_u32_u24 v7, 1184, v3', 'v_add_u32 v7, v7, v6')
    e('s_waitcnt lgkmcnt(0)')
    e.srd(8, 4, 5, Lo.WS_END)
    e.srd(12, 6, 7, Lo.L * Lo.D * 2)
    X, V = 8, 26
    for i in range(9):
        e(f'buffer_load_dwordx2 v[{X+2*i}:{X+2*i+1}], v5, s[12:15], 0 offen offset:{128*i}', vm=('x', i))
    for i in range(9):
        if i == 0: e.comment('STAMP 1')
        e.wait_vm(('x', i))
        if i in (0, 8): e.comment(f'STAMP {2 if i == 0 else 3}')
        for k in range(2):
            e(lo(V+4*i+2*k, X+2*i+k), hi(V+4*i+2*k+1, X+2*i+k))
    e(f'v_add_f32 v62, v{V}, v{V+1}')
    for k in range(2, 36): e(f'v_add_f32 v62, v62, v{V+k}')
    allreduce16(e, 62)
    e(f'v_mul_f32 v62, {f2h(1/576)}, v62')
    for k in range(36): e(f'v_sub_f32 v{V+k}, v{V+k}, v62')
    e(f'v_mul_f32 v62, v{V}, v{V}')
    for k in range(1, 36): e(f'v_fmac_f32 v62, v{V+k}, v{V+k}')
    allreduce16(e, 62)
    e(f'v_mul_f32 v62, {f2h(1/576)}, v62', f'v_add_f32 v62, {f2h(1e-5)}, v62', 'v_rsq_f32 v62, v62')
    for i in range(9):
        for k in range(2):
            e(f'v_mul_f32 v63, v62, v{V+4*i+2*k}', f'v_mul_f32 v64, v62, v{V+4*i+2*k+1}', f'v_cvt_pk_bf16_f32 v{X+2*i+k}, v63, v64')
        e(f'ds_write_b64 v7, v[{X+2*i}:{X+2*i+1}] offset:{128*i}', lg='w')
    e('v_lshrrev_b32 v3, 4, v2', 'v_lshlrev_b32 v3, 2, v3', 'v_bfe_u32 v4, v2, 2, 2', 'v_add_u32 v3, v3, v4', 'v_mul_u32_u24 v3, 1184, v3',
      'v_and_b32 v4, 3, v2', 'v_lshlrev_b32 v4, 3, v4', 'v_add_u32 v3, v3, v4', 's_mul_i32 s16, s20, 288', 'v_add_u32 v3, s16, v3')
    e('v_and_b32 v4, 15, v2', 'v_lshlrev_b32 v4, 5, v4', 'v_lshrrev_b32 v5, 4, v2', 'v_lshlrev_b32 v5, 3, v5', 'v_add_u32 v4, v4, v5')
    e('s_mul_i32 s16, s21, 18432', 's_mul_i32 s17, s20, 4608', 's_add_u32 s16, s16, s17', f's_add_u32 s16, s16, {Lo.XT:#x}')
    e('s_waitcnt lgkmcnt(0)', 's_barrier')
    e.lg = []
    for q in range(9):
        e(f'ds_read_b64_tr_b16 v[{X+2*q}:{X+2*q+1}], v3 offset:{32*q}', lg=('t', q))
    for q in range(9):
        e.wait_lg(('t', q))
        if q == 8: e('s_add_u32 s16, s16, 4096')
        e(f'buffer_store_dwordx2 v[{X+2*q}:{X+2*q+1}], v4, s[8:11], s16 offen offset:{(512*q) % 4096}{sm}', vm='o')
    e('s_endpgm')
    e.label('K1_KG'); e.hist = []; e.vm = []; e.lg = []
    PITCH = 144
    TA, TB, WST = 0, 32 * PITCH, 64 * PITCH
    TT = 4 * WST
    e(f's_load_dwordx8 s[36:43], s[0:1], {Lo.KA["logA"]}', f's_load_dwordx2 s[44:45], s[0:1], {Lo.KA["logdt"]}')
    if wpf: e(f's_load_dwordx2 s[46:47], s[0:1], {Lo.KA["w1"]}', f's_load_dwordx2 s[28:29], s[0:1], {Lo.KA["w2"]}')
    e('s_mov_b32 s21, s2')
    e('s_getpc_b64 s[30:31]')
    e.label('K1_PC2')
    e('s_add_u32 s30, s30, K1_TABLE-K1_PC2', 's_addc_u32 s31, s31, 0')
    e('v_lshlrev_b32 v3, 4, v0', 'v_mov_b32 v5, s31', 'v_add_co_u32 v4, vcc, s30, v3', 'v_addc_co_u32 v5, vcc, 0, v5, vcc')
    e('v_and_b32 v6, 31, v2', 's_lshl_b32 s16, s20, 5', 'v_add_u32 v7, s16, v6', 'v_lshlrev_b32 v7, 1, v7', 's_lshl_b32 s16, s21, 8')
    e('s_waitcnt lgkmcnt(0)')
    e.srd(8, 4, 5, Lo.WS_END)
    for k in range(4):
        e.srd(48 + 4*k, 36 + 2*k, 37 + 2*k, 576 * 128 * 2)
        e(f'buffer_load_ushort v{8+k}, v7, s[{48+4*k}:{51+4*k}], s16 offen', vm='p')
    e.srd(64, 44, 45, 576 * 2)
    e('s_lshl_b32 s17, s21, 1', 'v_mov_b32 v12, 0')
    e('buffer_load_ushort v12, v12, s[64:67], s17 offen', vm='p')
    e('global_load_dwordx4 v[64:67], v[4:5], off', vm='tab')
    e('v_lshrrev_b32 v13, 5, v2')
    e('v_cmp_eq_u32 vcc, 0, v13')
    def sel(dst, p0, p1):
        e(f'v_mov_b32 v{dst}, {f2h(float(p1))}', f'v_mov_b32 v14, {f2h(float(p0))}', f'v_cndmask_b32 v{dst}, v{dst}, v14, vcc')
    P_A0, P_B0, P_M4, P_M8, P_J1, P_J2 = 16, 17, 18, 19, 20, 21
    sel(P_A0, 0, 256); sel(P_B0, 0, 512); sel(P_M4, 1, 4); sel(P_M8, 1, 8); sel(P_J1, 1, 500); sel(P_J2, 1, 504)
    e(f'v_mul_u32_u24 v15, {16*PITCH}, v13', 'v_lshlrev_b32 v14, 2, v6', 'v_add_u32 v15, v15, v14', f's_mul_i32 s16, s20, {WST}', 'v_add_u32 v15, s16, v15')
    e.wait_vm('p')
    if wpf:
        e('s_mul_i32 s17, s21, 9216', 'v_lshlrev_b32 v69, 7, v0', 'v_cmp_gt_u32 vcc, 72, v0', 's_and_saveexec_b64 s[34:35], vcc')
        e.srd(68, 28, 29, Lo.F * Lo.D * 2)
        e('buffer_load_dword v70, v69, s[68:71], s17 offen', vm='pf')
        e('s_mov_b64 exec, s[34:35]')
    e('v_lshlrev_b32 v12, 16, v12', f'v_mul_f32 v12, {f2h(LOG2E)}, v12', 'v_exp_f32 v12, v12', 'v_cvt_pk_bf16_f32 v12, v12, v12', 'v_lshlrev_b32 v12, 16, v12')
    for k in range(4): e(f'v_lshlrev_b32 v{8+k}, 16, v{8+k}')
    e(f'v_mul_f32 v8, {f2h(LOG2E)}, v8', 'v_exp_f32 v8, v8', 'v_cvt_pk_bf16_f32 v8, v8, v8', 'v_lshlrev_b32 v8, 16, v8')
    e('v_mul_f32 v8, v8, v12', f'v_mul_f32 v8, {f2h(-LOG2E)}, v8')
    e('v_mul_f32 v9, v9, v12', f'v_mul_f32 v9, {f2h(1/(2*np.pi))}, v9')
    e('v_mul_f32 v10, v10, v12', 'v_mul_f32 v10, 2.0, v10', 'v_mul_f32 v11, v11, v12', 'v_mul_f32 v11, 2.0, v11')
    def cexp(re, im, p):
        return [f'v_mul_f32 v{re}, {p}, v8', f'v_mul_f32 v{im}, {p}, v9', f'v_exp_f32 v{re}, v{re}', f'v_fract_f32 v{im}, v{im}',
                f'v_cos_f32 v60, v{im}', f'v_sin_f32 v{im}, v{im}', f'v_mul_f32 v61, v{re}, v60', f'v_mul_f32 v{im}, v{re}, v{im}', f'v_mov_b32 v{re}, v61']
    AR, AI, BR, BI, WR, WI = 22, 23, 24, 25, 26, 27
    M4, M8, J1, J2 = 28, 30, 32, 34
    for (r, p) in ((AR, f'v{P_A0}'), (BR, f'v{P_B0}'), (WR, f2h(16.0)), (M4, f'v{P_M4}'), (M8, f'v{P_M8}'), (J1, f'v{P_J1}'), (J2, f'v{P_J2}')):
        for x in cexp(r, r + 1, p): e(x)
    e(f'v_mul_f32 v36, v10, v{AR}', f'v_mul_f32 v37, v10, v{AI}')
    e(f'v_fma_f32 v38, -v11, v{AI}, v36', f'v_fma_f32 v{AI}, v11, v{AR}, v37', f'v_mov_b32 v{AR}, v38')
    mults = [M4, M4, M4, J1, M8, J2, M8, M8] + [M8] * 7
    for i in range(16):
        e(f'v_cvt_pk_bf16_f32 v36, v{AR}, v{AI}', f'v_cvt_pk_bf16_f32 v37, v{BR}, -v{BI}')
        e(f'ds_write_b32 v15, v36 offset:{TA + PITCH*i}', f'ds_write_b32 v15, v37 offset:{TB + PITCH*i}')
        if i < 15:
            m = mults[i]
            e(f'v_mul_f32 v38, v{AI}, v{WI}', f'v_mul_f32 v39, v{AI}, v{WR}', f'v_mul_f32 v40, v{BI}, v{m+1}', f'v_mul_f32 v41, v{BI}, v{m}')
            e(f'v_fma_f32 v39, v{AR}, v{WI}, v39', f'v_fma_f32 v41, v{BR}, v{m+1}, v41')
            e(f'v_fma_f32 v{AR}, v{AR}, v{WR}, -v38', f'v_fma_f32 v{BR}, v{BR}, v{m}, -v40')
            e(f'v_mov_b32 v{AI}, v39', f'v_mov_b32 v{BI}, v41')
    e(f'v_mul_u32_u24 v14, {PITCH}, v6', 'v_lshlrev_b32 v13, 4, v13', 'v_add_u32 v14, v14, v13', f's_mul_i32 s16, s20, {WST}', 'v_add_u32 v14, s16, v14')
    ACC = 48
    e('s_waitcnt lgkmcnt(0)')
    e.lg = []
    for ks in range(4):
        e(f'ds_read_b128 v[{16+8*ks}:{19+8*ks}], v14 offset:{TA+32*ks}', f'ds_read_b128 v[{20+8*ks}:{23+8*ks}], v14 offset:{TB+32*ks}', lg=('f', ks))
    for ks in range(4):
        e.wait_lg(('f', ks))
        c = '0' if ks == 0 else f'v[{ACC}:{ACC+15}]'
        e(f'v_mfma_f32_32x32x16_bf16 v[{ACC}:{ACC+15}], v[{16+8*ks}:{19+8*ks}], v[{20+8*ks}:{23+8*ks}], {c}')
    e('v_lshlrev_b32 v3, 4, v2', f's_mul_i32 s16, s20, {WST}', 'v_add_u32 v4, s16, v3')
    for q in range(4):
        e(f'ds_write_b128 v4, v[{ACC+4*q}:{ACC+4*q+3}] offset:{1024*q}', lg='w')
    e('s_lshl_b32 s16, s20, 10', 'v_add_u32 v4, s16, v3')
    e('s_waitcnt lgkmcnt(0)', 's_barrier')
    e.lg = []
    for w in range(4):
        e(f'ds_read_b128 v[{12+4*w}:{15+4*w}], v4 offset:{WST*w}', lg='r')
    e('v_and_b32 v5, 31, v2', 'v_lshlrev_b32 v5, 6, v5', 'v_lshrrev_b32 v6, 5, v2', 'v_lshlrev_b32 v6, 3, v6', 'v_add_u32 v5, v5, v6', 's_lshl_b32 s16, s20, 4', 'v_add_u32 v5, s16, v5')
    e('s_waitcnt lgkmcnt(0)')
    e.lg = []
    for k in range(4):
        e(f'v_add_f32 v{12+k}, v{12+k}, v{16+k}', f'v_add_f32 v{20+k}, v{20+k}, v{24+k}')
    for k in range(4):
        e(f'v_add_f32 v{12+k}, v{12+k}, v{20+k}')
    e('v_cvt_pk_bf16_f32 v12, v12, v13', 'v_cvt_pk_bf16_f32 v13, v14, v15')
    e(f'ds_write_b64 v5, v[12:13] offset:{TT}')
    e.wait_vm('tab')
    for k in range(4):
        e(f'v_and_b32 v{12+2*k}, 0xffff, v{64+k}', f'v_lshrrev_b32 v{13+2*k}, 16, v{64+k}')
    e('s_waitcnt lgkmcnt(0)', 's_barrier')
    e.lg = []
    for k in range(8):
        e(f'ds_read_u16 v{24+k}, v{12+k} offset:{TT}')
    e('v_lshlrev_b32 v3, 4, v0', 's_lshl_b32 s16, s21, 12', f's_add_u32 s16, s16, {Lo.KREV:#x}')
    e('s_waitcnt lgkmcnt(0)')
    for k in range(4):
        e(f'v_lshl_or_b32 v{20+k}, v{25+2*k}, 16, v{24+2*k}')
    e(f'buffer_store_dwordx4 v[20:23], v3, s[8:11], s16 offen{sm}', vm='o')
    e('s_endpgm')
    e.label('K1_W1')
    e.hist = []; e.vm = []; e.lg = []
    e(f's_load_dwordx2 s[6:7], s[0:1], {Lo.KA["w1"]}')
    e(f's_sub_u32 s27, s2, {B_W1}')
    if R == 1: e('s_and_b32 s21, s27, 7')
    else: e('s_and_b32 s21, s27, 3', 's_lshl_b32 s21, s21, 1', 's_bfe_u32 s16, s27, 0x10002', 's_add_u32 s21, s21, s16')
    e('s_lshr_b32 s22, s27, 3', 's_mul_hi_u32 s23, s22, 0x55555556', 's_mul_i32 s24, s23, 3', 's_sub_u32 s24, s22, s24')
    e('v_lshrrev_b32 v3, 3, v2', 'v_mul_u32_u24 v3, 9216, v3', 'v_and_b32 v4, 7, v2', 'v_lshlrev_b32 v4, 4, v4', 'v_add_u32 v3, v3, v4')
    e('s_mul_i32 s16, s24, 192', 's_mul_i32 s17, s20, 48', 's_add_u32 s16, s16, s17', 's_mul_i32 s16, s16, 9216',
      's_mul_i32 s17, s21, 1152', 's_add_u32 s16, s16, s17', 's_lshl_b32 s17, s23, 7', 's_add_u32 s16, s16, s17', 's_mul_i32 s17, s20, 6144')
    e('s_waitcnt lgkmcnt(0)')
    e.srd(8, 4, 5, Lo.WS_END)
    e.srd(12, 6, 7, Lo.F * Lo.D * 2)
    for q in range(6):
        e('s_mov_b32 m0, s17')
        e('buffer_load_dwordx4 v3, s[12:15], s16 offen lds', vm='w')
        if q < 5: e(f's_add_u32 s16, s16, {8*9216}', 's_add_u32 s17, s17, 1024')
    e('v_lshrrev_b32 v4, 5, v2', 'v_lshlrev_b32 v4, 3, v4', 'v_bfe_u32 v5, v2, 2, 2', 'v_add_u32 v4, v4, v5', 'v_lshlrev_b32 v4, 7, v4',
      'v_bfe_u32 v5, v2, 4, 1', 'v_lshlrev_b32 v5, 5, v5', 'v_add_u32 v4, v4, v5', 'v_and_b32 v5, 3, v2', 'v_lshlrev_b32 v5, 3, v5', 'v_add_u32 v4, v4, v5')
    e('s_and_b32 s25, s20, 1', 's_lshr_b32 s26, s20, 1', 's_lshl_b32 s16, s25, 6', 's_mul_i32 s17, s26, 12288', 's_add_u32 s16, s16, s17', 'v_add_u32 v4, s16, v4')
    e('s_mul_i32 s16, s21, 18', 's_lshl_b32 s17, s23, 1', 's_add_u32 s16, s16, s17', 's_add_u32 s16, s16, s25', 's_mul_i32 s16, s16, 36',
      's_mul_i32 s17, s24, 12', 's_add_u32 s16, s16, s17', 's_mul_i32 s17, s26, 6', 's_add_u32 s16, s16, s17', 's_lshl_b32 s16, s16, 10', f's_add_u32 s16, s16, {Lo.W1F:#x}')
    e('v_lshlrev_b32 v5, 4, v2')
    e('s_waitcnt vmcnt(0)', 's_barrier')
    e.vm = []
    for q in range(6):
        e(f'ds_read_b64_tr_b16 v[{16+4*q}:{17+4*q}], v4 offset:{2048*q}', lg=('t', q))
        e(f'ds_read_b64_tr_b16 v[{18+4*q}:{19+4*q}], v4 offset:{2048*q+512}', lg=('t', q))
    for q in range(6):
        e.wait_lg(('t', q))
        if q == 4: e('s_add_u32 s16, s16, 4096')
        e(f'buffer_store_dwordx4 v[{16+4*q}:{19+4*q}], v5, s[8:11], s16 offen offset:{(q%4)*1024}{w1m}', vm='o')
    e.label('K1_END')
    e('s_endpgm')
    e.raw('.p2align 6')
    e.label('K1_TABLE')
    t = expand_table()
    for i in range(0, 2048, 16):
        e.raw('.short ' + ', '.join(str(x) for x in t[i:i+16]))
    return e

if __name__ == '__main__':
    import asmlib
    e = build()
    errs = asmlib.check(e.lines)
    print('instructions', len(e.lines), 'nops', e.nops, 'hazard errors', len(errs))
    for x in errs[:20]: print(x)
```

```python
from emit import Em
import layout as Lo
from common import f2h, lo, hi

NAME = 'k2_conv_kernel'
HZ, KE, KO, WSTR = 0, 4608, 4608 + 4160, 13120
LDS_BYTES = 4 * WSTR
NCONV = 144
NW2 = 144
GRID = NCONV + NW2

def build(R=2, sm=' sc1', wm=' sc1'):
    e = Em()
    e.label(NAME)
    e(f's_cmp_ge_u32 s2, {GRID}', 's_cbranch_scc1 K2_END')
    e(f's_load_dwordx2 s[4:5], s[0:1], {Lo.KA["ws"]}')
    e('v_lshrrev_b32 v1, 6, v0', 'v_and_b32 v2, 63, v0')
    e('v_readfirstlane_b32 s20, v1')
    e(f's_cmp_ge_u32 s2, {NCONV}', 's_cbranch_scc1 K2_W2')
    e(f's_load_dwordx2 s[6:7], s[0:1], {Lo.KA["Dskip"]}')
    e('s_lshl_b32 s21, s2, 2', 's_add_u32 s21, s21, s20')
    e(f's_mul_i32 s22, s20, {WSTR}')
    e('s_waitcnt lgkmcnt(0)')
    e.srd(8, 4, 5, Lo.WS_END)
    e.srd(12, 6, 7, Lo.D * 2)
    e('s_lshl_b32 s16, s21, 1', 'v_mov_b32 v15, 0')
    e('buffer_load_ushort v68, v15, s[12:15], s16 offen', vm='mod')
    e('v_and_b32 v3, 3, v2', 'v_mul_u32_u24 v3, 13824, v3', 'v_lshrrev_b32 v4, 2, v2', 'v_mul_u32_u24 v5, 2304, v4', 'v_add_u32 v3, v3, v5')
    e('s_lshl_b32 s16, s21, 2', f's_add_u32 s16, s16, {Lo.MODP:#x}')
    e('buffer_load_dword v6, v3, s[8:11], s16 offen', vm='mod')
    e('v_lshrrev_b32 v3, 1, v2', 'v_mul_u32_u24 v3, 18432, v3', 'v_and_b32 v5, 1, v2', 'v_lshlrev_b32 v5, 4, v5', 'v_add_u32 v3, v3, v5')
    e('s_lshl_b32 s16, s21, 5', f's_add_u32 s16, s16, {Lo.XT:#x}')
    XR, EA, EB = 16, 32, 48
    for u in range(4):
        e(f'buffer_load_dwordx4 v[{XR+4*u}:{XR+4*u+3}], v3, s[8:11], s16 offen', vm='x')
        if u < 3: e('s_add_u32 s16, s16, 589824')
    e('v_lshlrev_b32 v7, 4, v2')
    e('s_lshl_b32 s16, s21, 12', f's_add_u32 s16, s16, {Lo.KREV:#x}')
    for u in range(4):
        e(f'buffer_load_dwordx4 v[{EA+4*u}:{EA+4*u+3}], v7, s[8:11], s16 offen offset:{1024*u}', vm='k')
        e(f'buffer_load_dwordx4 v[{EB+4*u}:{EB+4*u+3}], v7, s[8:11], s16 offen offset:{1024*u+4}', vm='k')
    e('v_mov_b32 v64, 0', 'v_mov_b32 v65, 0', 'v_mov_b32 v66, 0', 'v_mov_b32 v67, 0')
    e('v_add_u32 v8, s22, v7')
    e('s_mov_b32 exec_hi, 0')
    e(f'ds_write_b128 v8, v[64:67] offset:{HZ}', lg='z')
    e('s_mov_b64 exec, 3')
    e(f'ds_write_b128 v8, v[64:67] offset:{KE+4096}', lg='z')
    e(f'ds_write_b128 v8, v[64:67] offset:{KO+4096}', lg='z')
    e('s_mov_b64 exec, -1')
    e.wait_vm('mod')
    if Lo.KSPLIT < 4:
        e('v_and_b32 v9, 3, v2', f'v_cmp_gt_u32 vcc, {Lo.KSPLIT}, v9', 'v_cndmask_b32 v6, 0, v6, vcc')
    e('v_add_f32_dpp v6, v6, v6 quad_perm:[1,0,3,2] row_mask:0xf bank_mask:0xf', 'v_add_f32_dpp v6, v6, v6 quad_perm:[2,3,0,1] row_mask:0xf bank_mask:0xf')
    e('v_cvt_pk_bf16_f32 v6, v6, v6', 'v_lshlrev_b32 v9, 16, v6')
    e('v_add_f32 v10, 1.0, v9', 'v_cvt_pk_bf16_f32 v10, v10, v10')
    e('v_lshlrev_b32 v11, 16, v10')
    e('v_readlane_b32 s24, v9, 0', 'v_readlane_b32 s25, v11, 4')
    e('v_readfirstlane_b32 s23, v68', 's_lshl_b32 s23, s23, 16')
    e('v_mul_u32_u24 v5, 1152, v4', 's_lshl_b32 s16, s21, 1', f's_add_u32 s16, s16, {Lo.MODB:#x}')
    e('s_mov_b64 exec, 0x111111')
    e('buffer_store_short v6, v5, s[8:11], s16 offen', vm='ms')
    e('s_mov_b64 exec, -1')
    e('v_cmp_eq_u32 vcc, 16, v2', 'v_cndmask_b32 v12, v6, v10, vcc')
    e('v_subrev_u32 v13, 2, v4', 'v_lshlrev_b32 v13, 3, v13', 's_mov_b32 s17, 0x040800', 'v_lshrrev_b32 v13, v13, s17', 'v_and_b32 v13, 0xff, v13')
    e('s_lshr_b32 s16, s21, 1', 's_lshl_b32 s16, s16, 4', 's_and_b32 s17, s21, 1', 's_lshl_b32 s17, s17, 1', 's_add_u32 s16, s16, s17', f's_add_u32 s16, s16, {Lo.MOD3:#x}')
    e('s_mov_b64 exec, 0x11100')
    e('buffer_store_short v12, v13, s[8:11], s16 offen', vm='ms')
    e('s_mov_b64 exec, -1')
    e('v_mov_b32 v14, s24')
    e.wait_vm('x')
    for u in range(4):
        for k in range(4):
            r = XR + 4*u + k
            e(lo(10, r), hi(11, r), 'v_fma_f32 v10, v10, s25, v14', 'v_fma_f32 v11, v11, s25, v14', f'v_cvt_pk_bf16_f32 v{r}, v10, v11')
        e(f'ds_write_b128 v8, v[{XR+4*u}:{XR+4*u+3}] offset:{HZ+512+1024*u}', lg='h')
    e.wait_vm('k')
    e('v_cmp_eq_u32 vcc, 63, v2', 'v_mov_b32 v10, -1', 'v_mov_b32 v11, 0xffff', 'v_cndmask_b32 v10, v10, v11, vcc')
    for u in range(4):
        e(f'ds_write_b128 v8, v[{EA+4*u}:{EA+4*u+3}] offset:{KE+1024*u}', lg='k')
        for k in range(4):
            e(f'v_alignbit_b32 v{EB+4*u+k}, v{EB+4*u+k}, v{EA+4*u+k}, 16')
        if u == 3: e(f'v_and_b32 v{EB+15}, v{EB+15}, v10')
        e(f'ds_write_b128 v8, v[{EB+4*u}:{EB+4*u+3}] offset:{KO+1024*u}', lg='k')
    e('v_and_b32 v3, 15, v2', 'v_lshrrev_b32 v4, 4, v2')
    VB, VA, VE = 5, 10, 9
    e(f'v_lshlrev_b32 v{VB}, 5, v3', 'v_lshlrev_b32 v6, 4, v4', f'v_add_u32 v{VB}, v{VB}, v6', f's_add_u32 s16, s22, {HZ+480}', f'v_add_u32 v{VB}, s16, v{VB}')
    e(f'v_lshlrev_b32 v{VE}, 5, v3', 'v_lshlrev_b32 v14, 3, v4', f'v_add_u32 v{VE}, v{VE}, v14', f'v_add_u32 v{VE}, s22, v{VE}')
    e('v_sub_u32 v14, 2031, v3', 'v_lshrrev_b32 v14, 1, v14', 'v_lshlrev_b32 v14, 2, v14', 'v_add_u32 v14, v14, v6')
    e('v_and_b32 v15, 1, v3', f'v_mul_u32_u24 v15, {KO-KE}, v15', f'v_sub_u32 v15, {KO}, v15', 'v_add_u32 v14, v14, v15', 'v_add_u32 v14, s22, v14')
    for q in range(4):
        e(f'v_subrev_u32 v{VA+q}, {512*(2*q+1)}, v14')
    ACC = 16
    SA, SB = [48, 112], [80, 144]
    for t in range(32): e(f'v_mov_b32 v{ACC+t}, 0')
    def reads(st):
        out = []
        for p in range(8):
            out.append(f'ds_read_b128 v[{SB[st]+4*p}:{SB[st]+4*p+3}], v{VB} offset:{512*p}')
            q, odd = p >> 1, p & 1
            o = 0 if odd else 128
            out.append(f'ds_read2_b32 v[{SA[st]+4*p}:{SA[st]+4*p+1}], v{VA+q} offset0:{o} offset1:{o+1}')
            out.append(f'ds_read2_b32 v[{SA[st]+4*p+2}:{SA[st]+4*p+3}], v{VA+q} offset0:{o+2} offset1:{o+3}')
        return out
    def step():
        return [f'v_subrev_u32 v{VB}, 64, v{VB}'] + [f'v_subrev_u32 v{VA+q}, 64, v{VA+q}' for q in range(4)]
    e('s_waitcnt lgkmcnt(0)')
    e.lg = []
    for x in reads(0): e(x)
    for x in step(): e(x)
    e('s_mov_b32 s16, 4')
    e.label('K2_LOOP')
    for st in range(2):
        e('s_waitcnt lgkmcnt(0)')
        rd = reads(st ^ 1)
        n = 0
        for i in range(8):
            for t in range(i, 8):
                e(f'v_mfma_f32_16x16x32_bf16 v[{ACC+4*t}:{ACC+4*t+3}], v[{SA[st]+4*i}:{SA[st]+4*i+3}], v[{SB[st]+4*(t-i)}:{SB[st]+4*(t-i)+3}], v[{ACC+4*t}:{ACC+4*t+3}]')
                n += 1
                if rd and n >= 2: e(rd.pop(0))
        for x in step(): e(x)
    e('s_sub_u32 s16, s16, 1', 's_cmp_lg_u32 s16, 0', 's_cbranch_scc1 K2_LOOP')
    e.lg = []
    e('s_waitcnt lgkmcnt(0)')
    for t in range(8):
        e(f'ds_read_b64 v[{48+2*t}:{49+2*t}], v{VE} offset:{HZ+512+512*t}', lg=('h', t))
    for t in range(8):
        e.wait_lg(('h', t))
        r = 48 + 2*t
        e(lo(10, r), hi(11, r), lo(12, r+1), hi(13, r+1))
        for k in range(4):
            e(f'v_fma_f32 v{10+k}, v{10+k}, s23, v{ACC+4*t+k}')
        e(f'v_cvt_pk_bf16_f32 v{r}, v10, v11', f'v_cvt_pk_bf16_f32 v{r+1}, v12, v13')
        e(f'ds_write_b64 v{VE}, v[{r}:{r+1}] offset:{KE+512*t}', lg='aw')
    e('s_waitcnt lgkmcnt(0)', 's_barrier')
    e('v_bfe_u32 v10, v2, 2, 2', f'v_mul_u32_u24 v10, {WSTR}, v10', 'v_lshrrev_b32 v11, 4, v2', 'v_lshlrev_b32 v11, 5, v11', 'v_add_u32 v10, v10, v11',
      'v_and_b32 v11, 3, v2', 'v_lshlrev_b32 v11, 3, v11', 'v_add_u32 v10, v10, v11', 's_lshl_b32 s16, s20, 10', 'v_add_u32 v10, s16, v10')
    e('v_lshlrev_b32 v11, 3, v2', 's_lshl_b32 s16, s2, 14', 's_lshl_b32 s17, s20, 12', 's_add_u32 s16, s16, s17', f's_add_u32 s16, s16, {Lo.AT4:#x}')
    e.lg = []
    for q in range(8):
        e(f'ds_read_b64_tr_b16 v[{16+2*q}:{17+2*q}], v10 offset:{KE+128*q}', lg=('t', q))
    for q in range(8):
        e.wait_lg(('t', q))
        e(f'buffer_store_dwordx2 v[{16+2*q}:{17+2*q}], v11, s[8:11], s16 offen offset:{512*q}{sm}', vm='o')
    e('s_endpgm')
    e.label('K2_W2')
    e.hist = []; e.vm = []; e.lg = []
    e(f's_load_dwordx2 s[6:7], s[0:1], {Lo.KA["w2"]}')
    e(f's_sub_u32 s21, s2, {NCONV}', 's_lshr_b32 s23, s21, 3')
    if R == 1: e('s_and_b32 s22, s21, 7')
    else: e('s_and_b32 s22, s21, 3', 's_lshl_b32 s22, s22, 1', 's_bfe_u32 s16, s21, 0x10002', 's_add_u32 s22, s22, s16')
    e('s_lshr_b32 s16, s23, 2', 's_and_b32 s17, s23, 3', 's_mul_i32 s26, s16, 3', 's_add_u32 s26, s26, s17', 's_add_u32 s16, s16, 14',
      's_cmp_eq_u32 s17, 3', 's_cselect_b32 s26, s16, s26', 's_sub_u32 s16, s23, 4', 's_cmp_ge_u32 s23, 16', 's_cselect_b32 s26, s16, s26')
    e('s_mul_i32 s16, s22, 18', 's_add_u32 s16, s16, s23', 's_mul_i32 s16, s16, 36864', 's_mul_i32 s17, s20, 9216', 's_add_u32 s16, s16, s17')
    e('v_lshlrev_b32 v3, 4, v2')
    e('s_waitcnt lgkmcnt(0)')
    e.srd(8, 4, 5, Lo.WS_END)
    e.srd(12, 6, 7, Lo.F * Lo.D * 2)
    for j in range(9):
        if j % 4 == 0: e('s_mov_b32 m0, s17')
        e(f'buffer_load_dwordx4 v3, s[12:15], s16 offen offset:{(j%4)*1024} lds', vm='w')
        if j % 4 == 3: e('s_add_u32 s16, s16, 4096', 's_add_u32 s17, s17, 4096')
    e('v_lshrrev_b32 v4, 5, v2', 'v_lshlrev_b32 v4, 2, v4', 'v_bfe_u32 v5, v2, 2, 2', 'v_add_u32 v4, v4, v5', 'v_mul_u32_u24 v4, 1152, v4',
      'v_bfe_u32 v5, v2, 4, 1', 'v_lshlrev_b32 v5, 5, v5', 'v_add_u32 v4, v4, v5', 'v_and_b32 v5, 3, v2', 'v_lshlrev_b32 v5, 3, v5', 'v_add_u32 v4, v4, v5')
    e('s_and_b32 s24, s20, 1', 's_lshr_b32 s25, s20, 1', 's_mul_i32 s16, s24, 18432', 's_mul_i32 s17, s25, 576', 's_add_u32 s16, s16, s17', 'v_add_u32 v4, s16, v4')
    e('s_mul_i32 s16, s22, 18', 's_mul_i32 s17, s25, 9', 's_add_u32 s16, s16, s17', 's_mul_i32 s16, s16, 36', 's_lshl_b32 s17, s26, 1', 's_add_u32 s16, s16, s17',
      's_add_u32 s16, s16, s24', 's_lshl_b32 s16, s16, 10', f's_add_u32 s16, s16, {Lo.W2F:#x}')
    e('s_waitcnt vmcnt(0)', 's_barrier')
    e.vm = []
    for q in range(9):
        e(f'ds_read_b64_tr_b16 v[{16+4*q}:{17+4*q}], v4 offset:{64*q}', lg=('t', q))
        e(f'ds_read_b64_tr_b16 v[{18+4*q}:{19+4*q}], v4 offset:{9216+64*q}', lg=('t', q))
        if q >= 4:
            e.wait_lg(('t', q-4))
            e(f'buffer_store_dwordx4 v[{16+4*(q-4)}:{19+4*(q-4)}], v3, s[8:11], s16 offen{wm}', vm='o')
            e('s_add_u32 s16, s16, 36864')
    for q in range(5, 9):
        e.wait_lg(('t', q))
        e(f'buffer_store_dwordx4 v[{16+4*q}:{19+4*q}], v3, s[8:11], s16 offen{wm}', vm='o')
        e('s_add_u32 s16, s16, 36864')
    e.label('K2_END')
    e('s_endpgm')
    return e

if __name__ == '__main__':
    import asmlib
    e = build()
    errs = asmlib.check(e.lines)
    print('instructions', len(e.lines), 'nops', e.nops, 'hazard errors', len(errs))
    for x in errs[:20]: print(x)
```

```python
from emit import Em
import layout as Lo
from common import f2h, allreduce32, lo, hi

NAME = 'k3_ln2_kernel'
PITCH = 1152 + 16
LDS_BYTES = 2 * 8 * PITCH

def build(sm=' sc1', flags=True):
    e = Em()
    e.label(NAME)
    e('s_cmp_ge_u32 s2, 256', 's_cbranch_scc1 K3_END')
    e(f's_load_dwordx2 s[4:5], s[0:1], {Lo.KA["ws"]}', f's_load_dwordx2 s[6:7], s[0:1], {Lo.KA["u"]}')
    X, A, M, V, P = 16, 26, 36, 72, 92
    e('s_and_b32 s16, s2, 7', 's_lshr_b32 s17, s2, 4', 's_lshl_b32 s17, s17, 3', 's_add_u32 s16, s16, s17', 's_lshl_b32 s16, s16, 1',
      's_bfe_u32 s17, s2, 0x10003', 's_add_u32 s19, s16, s17')
    e('v_lshrrev_b32 v15, 5, v0', 's_lshl_b32 s16, s19, 3', 'v_add_u32 v1, s16, v15', 'v_and_b32 v2, 31, v0')
    e('v_lshrrev_b32 v5, 1, v2', 'v_lshlrev_b32 v5, 14, v5', 'v_lshlrev_b32 v6, 3, v1', 'v_add_u32 v5, v5, v6',
      'v_and_b32 v6, 1, v2', 'v_lshlrev_b32 v6, 2, v6', 'v_add_u32 v5, v5, v6')
    e('v_mul_u32_u24 v3, 1152, v1', 'v_lshlrev_b32 v4, 2, v2', 'v_add_u32 v3, v3, v4')
    e('v_lshlrev_b32 v6, 4, v2')
    e('s_waitcnt lgkmcnt(0)')
    e.srd(8, 4, 5, Lo.WS_END)
    e.srd(12, 6, 7, Lo.L * Lo.D * 2)
    e(f's_mov_b32 s17, {Lo.AT4:#x}', f's_mov_b32 s18, {Lo.MOD3:#x}')
    for i in range(9):
        e(f'buffer_load_dword v{A+i}, v5, s[8:11], s17 offen', vm=('in', i))
        e(f'buffer_load_dword v{X+i}, v3, s[12:15], 0 offen offset:{128*i}', vm=('in', i))
        e(f'buffer_load_dwordx3 v[{M+4*i}:{M+4*i+2}], v6, s[8:11], s18 offen offset:{(512*i) % 4096}', vm=('in', i))
        if i < 8: e('s_add_u32 s17, s17, 0x40000')
        if i == 7: e('s_add_u32 s18, s18, 4096')
    if flags:
        e('s_lshl_b32 s17, s2, 7', f's_add_u32 s17, s17, {Lo.FLG:#x}', 'v_mov_b32 v14, 0', 's_mov_b64 exec, 1')
        e('buffer_store_dword v14, v14, s[8:11], s17 offen sc1', vm='flag')
        e('s_mov_b64 exec, -1')
    e(f'v_mul_u32_u24 v7, {PITCH}, v15', 'v_add_u32 v7, v7, v4')
    for i in range(9):
        e.wait_vm(('in', i))
        if i in (0, 8): e.comment(f'STAMP {2 if i == 0 else 3}')
        e(lo(9, X+i), hi(10, X+i), lo(11, A+i), hi(12, A+i), lo(13, M+4*i), hi(14, M+4*i))
        e('v_fma_f32 v9, v13, v11, v9', 'v_fma_f32 v10, v14, v12, v10')
        e(f'v_cvt_pk_bf16_f32 v{P+i}, v9, v10')
        e(f'ds_write_b32 v7, v{P+i} offset:{128*i}', lg='w')
        e(lo(V+2*i, P+i), hi(V+2*i+1, P+i))
    def layernorm_center():
        e(f'v_add_f32 v9, v{V}, v{V+1}', f'v_add_f32 v10, v{V+2}, v{V+3}')
        for k in range(4, 18, 2): e(f'v_add_f32 v9, v9, v{V+k}', f'v_add_f32 v10, v10, v{V+k+1}')
        e('v_add_f32 v9, v9, v10')
        allreduce32(e, 9, 10)
        e(f'v_mul_f32 v9, {f2h(1/576)}, v9')
        for k in range(18): e(f'v_sub_f32 v{V+k}, v{V+k}, v9')
        e(f'v_mul_f32 v9, v{V}, v{V}', f'v_mul_f32 v10, v{V+1}, v{V+1}')
        for k in range(2, 18, 2): e(f'v_fmac_f32 v9, v{V+k}, v{V+k}', f'v_fmac_f32 v10, v{V+k+1}, v{V+k+1}')
        e('v_add_f32 v9, v9, v10')
        allreduce32(e, 9, 10)
        e(f'v_mul_f32 v9, {f2h(1/576)}, v9', f'v_add_f32 v9, {f2h(1e-5)}, v9', 'v_rsq_f32 v9, v9')
    layernorm_center()
    for i in range(9):
        e(lo(10, M+4*i+1), hi(11, M+4*i+1), lo(12, M+4*i+2), hi(13, M+4*i+2))
        e('v_mul_f32 v10, v9, v10', 'v_mul_f32 v11, v9, v11')
        e(f'v_fma_f32 v{V+2*i}, v{V+2*i}, v10, v12', f'v_fma_f32 v{V+2*i+1}, v{V+2*i+1}, v11, v13')
    layernorm_center()
    for i in range(9):
        e(f'v_mul_f32 v10, v9, v{V+2*i}', f'v_mul_f32 v11, v9, v{V+2*i+1}', f'v_cvt_pk_bf16_f32 v{P+i}, v10, v11')
        e(f'ds_write_b32 v7, v{P+i} offset:{8*PITCH + 128*i}', lg='w')
    for k in range(3):
        a, b, c, d = 16 + 4*k, 17 + 4*k, 18 + 4*k, 19 + 4*k
        e(f'v_add_u32 v9, {256*k}, v0')
        e(f'v_mul_u32_u24 v10, 911, v9', 'v_lshrrev_b32 v10, 16, v10', 'v_mul_u32_u24 v11, 72, v10', 'v_sub_u32 v11, v9, v11')
        e(f'v_mul_u32_u24 v{a}, {PITCH}, v10', 'v_lshlrev_b32 v11, 4, v11', f'v_add_u32 v{a}, v{a}, v11')
        e(f'v_lshlrev_b32 v{b}, 4, v9')
        e('v_lshrrev_b32 v10, 3, v9', 'v_and_b32 v11, 7, v9')
        e(f'v_mul_u32_u24 v{c}, {PITCH}, v11', 'v_lshlrev_b32 v12, 4, v10', f'v_add_u32 v{c}, v{c}, v12')
        e(f'v_lshlrev_b32 v{d}, 9, v10', 'v_lshlrev_b32 v11, 4, v11', f'v_add_u32 v{d}, v{d}, v11')
    e('s_mul_i32 s16, s19, 9216', f's_add_u32 s16, s16, {Lo.X2:#x}')
    e('s_lshr_b32 s17, s19, 2', 's_mul_i32 s17, s17, 36864', 's_and_b32 s18, s19, 3', 's_lshl_b32 s18, s18, 7', 's_add_u32 s17, s17, s18', f's_add_u32 s17, s17, {Lo.YF:#x}')
    e('s_waitcnt lgkmcnt(0)', 's_barrier')
    e.lg = []
    for k in range(3):
        e(f'ds_read_b128 v[{36+8*k}:{39+8*k}], v{16+4*k}', f'ds_read_b128 v[{40+8*k}:{43+8*k}], v{18+4*k} offset:{8*PITCH}', lg=('r', k))
    for k in range(3):
        e.wait_lg(('r', k))
        if k == 2:
            e('v_cmp_gt_u32 vcc, 64, v0', 's_and_saveexec_b64 s[20:21], vcc', 's_cbranch_execz K3_END')
        e(f'buffer_store_dwordx4 v[{40+8*k}:{43+8*k}], v{19+4*k}, s[8:11], s17 offen{sm}', vm='o')
        e(f'buffer_store_dwordx4 v[{36+8*k}:{39+8*k}], v{17+4*k}, s[8:11], s16 offen{sm}', vm='o')
    e.label('K3_END')
    e('s_endpgm')
    return e

if __name__ == '__main__':
    import asmlib
    e = build()
    errs = asmlib.check(e.lines)
    print('instructions', len(e.lines), 'nops', e.nops, 'hazard errors', len(errs))
    for x in errs[:20]: print(x)
```

```python
from emit import Em, cost
import layout as Lo
from common import f2h

NAME = 'k4_mlp_kernel'
LDS_Y, LDS_H, LDS_B = 0, 73728, 147456
LDS_Z = LDS_B + 18 * 128
LDS_BYTES = LDS_Z + 128
C0 = -2.302208198
C1 = C0 * 0.044715

V_L16, V_RD, V_BASE, V_HW, V_HWH, V_BR, V_BRH, V_C0, V_XW, V_XR = 1, 2, 4, 6, 8, 9, 10, 11, 12, 13
V_BIAS, V_HP, V_T, V_TMP, V_YX, V_ACC, V_RING, V_SH = 16, 32, 40, 44, 48, 80, 144, 240
S_WS, S_B1 = 8, 12
S_W, S_A, S_SEG1, S_SEG2, S_SEG2H, S_P0, S_P1, S_PH = 20, 21, 22, 23, 24, 25, 26, 27
S_PAR, S_D1, S_DA, S_DB, S_DC, S_DS = 18, 28, 29, 30, 31, 32
S_Y, S_YL = 40, 41
S_O18A, S_O18B, S_O14A, S_O14B, S_O28A, S_O28B, S_HW3 = 42, 43, 44, 45, 46, 47, 48

def tile_pos(ftl):
    if ftl >= 16: return 12 + (ftl - 16)
    w, i = ftl >> 2, ftl & 3
    return 3 * w + i if i < 3 else 14 + w

def yreg(i):
    return f'a[{4*i}:{4*i+3}]' if i < 64 else f'v[{V_YX+4*(i-64)}:{V_YX+4*(i-64)+3}]'
def acc(buf, slot): return V_ACC + 32 * buf + 16 * slot
def rng(b, n): return f'v[{b}:{b+n-1}]'

def build(NA=24, store_mod=' sc1', G=2, stamps=False, R=2, prefetch=False, pstamps=False, fuse=True, spin=1 << 22):
    e = Em()
    e.label(NAME)
    nst = [0]
    def stamp(p=False):
        if stamps and (p == pstamps or nst[0] == 0) and nst[0] < 8:
            e(f's_memtime s[{56+2*nst[0]}:{57+2*nst[0]}]'); nst[0] += 1
    stamp()
    e('s_cmp_ge_u32 s2, 256', 's_cbranch_scc1 K4_END')
    e(f's_load_dwordx2 s[4:5], s[0:1], {Lo.KA["ws"]}', f's_load_dwordx2 s[6:7], s[0:1], {Lo.KA["b1"]}')
    e('v_lshrrev_b32 v14, 6, v0', 'v_and_b32 v15, 63, v0')
    e(f'v_readfirstlane_b32 s{S_W}, v14')
    e(f'v_lshlrev_b32 v{V_L16}, 4, v15')
    if R == 1:
        e('s_and_b32 s16, s2, 7', 's_lshr_b32 s17, s2, 3', 's_lshr_b32 s49, s2, 3')
    else:
        e('s_and_b32 s16, s2, 3', 's_lshl_b32 s16, s16, 1', 's_bfe_u32 s17, s2, 0x10003', 's_add_u32 s16, s16, s17')
        e('s_bfe_u32 s17, s2, 0x10002', 's_lshl_b32 s17, s17, 4', 's_lshr_b32 s49, s2, 4', 's_add_u32 s17, s17, s49')
    e(f's_and_b32 s{S_PAR}, s{S_W}, 1', f's_lshr_b32 s19, s{S_W}, 1')
    P = f's{S_PAR}'
    e(f's_mul_i32 s{S_D1}, {P}, -36864', f's_mul_i32 s{S_DA}, {P}, -28672', f's_mul_i32 s{S_DB}, {P}, 18432', f's_mul_i32 s{S_DC}, {P}, -8192')
    e(f's_mul_i32 s{S_DS}, {P}, -10240', f's_add_u32 s{S_DS}, s{S_DS}, 14336')
    e(f's_mul_i32 s{S_O18A}, {P}, 18432', f's_sub_u32 s{S_O18B}, 18432, s{S_O18A}')
    e(f's_mul_i32 s{S_O14A}, {P}, 14336', f's_sub_u32 s{S_O14B}, 14336, s{S_O14A}')
    e(f's_lshl_b32 s{S_O28A}, {P}, 12', f's_sub_u32 s{S_O28B}, {28672+4096}, s{S_O28A}', f's_add_u32 s{S_O28A}, s{S_O28A}, 28672')
    e('s_mul_i32 s33, s16, 18')
    e(f's_lshl_b32 s34, s{S_W}, 2', 's_add_u32 s34, s34, s33', 's_mul_i32 s34, s34, 36864')
    e('s_add_u32 s35, s33, s19', 's_add_u32 s35, s35, 16', 's_mul_i32 s35, s35, 36864')
    e(f's_add_u32 s{S_A}, s35, s{S_O18A}', f's_add_u32 s{S_A}, s{S_A}, {Lo.W1F:#x}')
    e(f's_add_u32 s{S_SEG1}, s34, s{S_O18A}', f's_add_u32 s{S_SEG1}, s{S_SEG1}, {Lo.W1F:#x}')
    e(f's_add_u32 s{S_SEG2}, s34, s{S_O14A}', f's_add_u32 s{S_SEG2}, s{S_SEG2}, {Lo.W2F:#x}')
    e(f's_add_u32 s{S_SEG2H}, s35, s{S_O14A}', f's_add_u32 s{S_SEG2H}, s{S_SEG2H}, {Lo.W2F:#x}')
    e('s_lshl_b32 s34, s17, 3', 's_add_u32 s34, s34, s16', 's_mul_i32 s34, s34, 73728', f's_add_u32 s34, s34, {Lo.PART:#x}')
    e(f's_lshl_b32 s35, s{S_W}, 14', 's_add_u32 s35, s35, s34')
    e(f's_lshl_b32 s36, {P}, 11', f's_add_u32 s{S_P0}, s35, s36', 's_xor_b32 s36, s36, 2048', f's_add_u32 s{S_P1}, s35, s36')
    e('s_add_u32 s35, s19, 16', 's_lshl_b32 s35, s35, 12', 's_add_u32 s35, s35, s34', f's_lshl_b32 s36, {P}, 11', f's_add_u32 s{S_PH}, s35, s36')
    e(f's_mul_i32 s35, {P}, 36864', 's_mul_i32 s36, s19, 18432', 's_add_u32 s36, s36, s35')
    e('s_mul_i32 s37, s17, 73728', 's_add_u32 s37, s37, s36', f's_add_u32 s{S_Y}, s37, {Lo.YF:#x}', f's_add_u32 s{S_YL}, s36, {LDS_Y}')
    e(f's_xor_b32 s36, {P}, 1', 's_mul_i32 s36, s36, 36864')
    e(f'v_add_u32 v{V_BASE}, s35, v{V_L16}', f'v_add_u32 v{V_BASE+1}, s36, v{V_L16}')
    e(f'v_add_u32 v{V_RD}, s{S_O18A}, v{V_BASE}', f'v_add_u32 v{V_RD+1}, s{S_O18A}, v{V_BASE+1}')
    e(f's_mul_i32 s37, s{S_W}, 6144', f's_add_u32 s37, s37, {LDS_H}')
    e(f'v_add_u32 v{V_HW}, s37, v{V_BASE}', f'v_add_u32 v{V_HW+1}, s37, v{V_BASE+1}')
    e(f's_lshl_b32 s{S_HW3}, s{S_W}, 12', f's_sub_u32 s{S_HW3}, 28672, s{S_HW3}')
    e('s_lshl_b32 s37, s19, 11', f's_add_u32 s37, s37, {LDS_H + 24576}', f'v_add_u32 v{V_HWH}, s37, v{V_BASE}')
    e(f's_lshl_b32 s37, s{S_W}, 11', f's_add_u32 s37, s37, {LDS_H + 28672}', f'v_add_u32 v{V_XW}, s37, v{V_L16}')
    e(f's_xor_b32 s37, s{S_W}, 1', 's_lshl_b32 s37, s37, 11', f's_add_u32 s37, s37, {LDS_H + 28672}', f'v_add_u32 v{V_XR}, s37, v{V_L16}')
    e('v_lshrrev_b32 v14, 5, v15', 'v_lshlrev_b32 v14, 6, v14')
    e(f's_lshl_b32 s37, s{S_W}, 9', f's_add_u32 s37, s37, {LDS_B}', f'v_add_u32 v{V_BR}, s37, v14')
    e('s_lshl_b32 s37, s19, 7', f's_add_u32 s37, s37, {LDS_B + 2048}', f's_cmp_eq_u32 {P}, 0', f's_cselect_b32 s37, s37, {LDS_Z}', f'v_add_u32 v{V_BRH}, s37, v14')
    e(f'v_mov_b32 v{V_C0}, {f2h(C0)}')
    e('s_waitcnt lgkmcnt(0)')
    stamp(True)
    e.srd(S_WS, 4, 5, Lo.WS_END)
    e.srd(S_B1, 6, 7, Lo.F * 2)
    e('s_mul_i32 s37, s16, 1152', 'v_lshlrev_b32 v14, 3, v0', 'v_add_u32 v14, s37, v14')
    e(f'buffer_load_dwordx2 v[14:15], v14, s[{S_B1}:{S_B1+3}], 0 offen', vm='bias')

    NF = 324
    st = dict(next=0, off=0)
    def seg(setto=None, delta=None, const=0):
        if setto is not None:
            e(f's_mov_b32 s{S_A}, s{setto}')
        else:
            if st['off'] + const: e(f's_add_u32 s{S_A}, s{S_A}, {st["off"] + const}')
            e(f's_add_u32 s{S_A}, s{S_A}, s{delta}')
        st['off'] = 0
    def load_frag():
        n = st['next']
        if n >= NF: return
        if 18 <= n < 162:
            k = (n - 18) % 36
            if k == 0: seg(setto=S_SEG1); e(f's_add_u32 s{S_SEG1}, s{S_SEG1}, 36864')
            if k == 18: seg(delta=S_D1)
        elif n >= 162:
            m = n - 162
            if 36 <= m < 54:
                k = m - 36
                if k == 0: seg(setto=S_SEG2H)
                if k == 14: seg(delta=S_DS)
            else:
                k = m if m < 36 else (m - 54) % 36
                if k == 0: seg(setto=S_SEG2); e(f's_add_u32 s{S_SEG2}, s{S_SEG2}, 36864')
                if k == 14: seg(delta=S_DA)
                if k == 28: seg(delta=S_DB)
                if k == 32: seg(delta=S_DC)
        r = V_RING + 4 * (n % NA)
        e(f'buffer_load_dwordx4 {rng(r,4)}, v{V_L16}, s[{S_WS}:{S_WS+3}], s{S_A} offen offset:{st["off"]}', vm=('f', n))
        st['off'] += 1024
        if st['off'] == 4096:
            e(f's_add_u32 s{S_A}, s{S_A}, 4096'); st['off'] = 0
        st['next'] = n + 1
    def y_chunk(c):
        for j in range(6):
            if j % 4 == 0: e(f's_mov_b32 m0, s{S_YL}')
            e(f'buffer_load_dwordx4 v{V_L16}, s[{S_WS}:{S_WS+3}], s{S_Y} offen offset:{(j%4)*1024} lds', vm=('y', c))
            if j == 3: e(f's_add_u32 s{S_Y}, s{S_Y}, 4096', f's_add_u32 s{S_YL}, s{S_YL}, 4096')
        e(f's_add_u32 s{S_Y}, s{S_Y}, 2048', f's_add_u32 s{S_YL}, s{S_YL}, 2048')
    y_chunk(0)
    for _ in range(6): load_frag()
    y_chunk(1)
    for _ in range(6): load_frag()
    y_chunk(2)
    for _ in range(NA - 12): load_frag()
    if prefetch:
        nshare = 32 if R == 1 else 16
        e('s_lshl_b32 s37, s49, 8', 'v_add_u32 v44, s37, v0', 'v_lshlrev_b32 v44, 7, v44', 's_mul_i32 s37, s16, 663552')
        step = nshare * 256 * 128
        for base in ((Lo.W2F,) if prefetch == 'w2' else (Lo.W1F, Lo.W2F)):
            e(f's_add_u32 s38, s37, {base:#x}')
            nrep = (663552 + step - 1) // step
            for k in range(nrep):
                if (k + 1) * step > 663552:
                    e(f'v_cmp_gt_u32 vcc, {663552 - k*step}, v44', 's_and_saveexec_b64 s[52:53], vcc')
                e(f'buffer_load_dword v45, v44, s[{S_WS}:{S_WS+3}], s38 offen', vm='pf')
                if (k + 1) * step > 663552: e('s_mov_b64 exec, s[52:53]')
                else: e(f's_add_u32 s38, s38, {step}')
    stamp(True)
    e('v_lshrrev_b32 v46, 3, v0', 'v_lshlrev_b32 v46, 7, v46', 'v_and_b32 v47, 1, v0', 'v_lshlrev_b32 v47, 6, v47', 'v_add_u32 v46, v46, v47',
      'v_bfe_u32 v47, v0, 1, 2', 'v_lshlrev_b32 v47, 4, v47', 'v_add_u32 v46, v46, v47', f'v_add_u32 v46, {LDS_B}, v46')
    e.wait_vm('bias')
    stamp(True)
    e('v_lshlrev_b32 v40, 16, v14', 'v_and_b32 v41, 0xffff0000, v14', 'v_lshlrev_b32 v42, 16, v15', 'v_and_b32 v43, 0xffff0000, v15')
    e('v_cmp_gt_u32 vcc, 144, v0')
    for k in range(4): e(f'v_cndmask_b32 v{40+k}, 0, v{40+k}, vcc')
    e('v_cmp_gt_u32 vcc, 152, v0', 's_and_saveexec_b64 s[38:39], vcc')
    e('ds_write_b128 v46, v[40:43]', lg='bw')
    e('s_mov_b64 exec, s[38:39]')

    def bias_reads(addr, off):
        return [f'ds_read_b128 {rng(V_BIAS+4*c,4)}, v{addr} offset:{off+16*c}' for c in range(4)]
    def gelu_group(xs, hp):
        ts = [V_T + j for j in range(4)]
        out = []
        for j in range(4): out.append(f'v_mul_f32 v{ts[j]}, v{xs[j]}, v{xs[j]}')
        for j in range(4): out.append(f'v_fmamk_f32 v{ts[j]}, v{ts[j]}, {f2h(C1)}, v{V_C0}')
        for j in range(4): out.append(f'v_mul_f32 v{ts[j]}, v{xs[j]}, v{ts[j]}')
        for j in range(4): out.append(f'v_exp_f32 v{ts[j]}, v{ts[j]}')
        for j in range(4): out.append(f'v_add_f32 v{ts[j]}, 1.0, v{ts[j]}')
        for j in range(4): out.append(f'v_rcp_f32 v{ts[j]}, v{ts[j]}')
        for j in range(4): out.append(f'v_mul_f32 v{ts[j]}, v{xs[j]}, v{ts[j]}')
        out.append(f'v_cvt_pk_bf16_f32 v{hp}, v{ts[0]}, v{ts[1]}')
        out.append(f'v_cvt_pk_bf16_f32 v{hp+1}, v{ts[2]}, v{ts[3]}')
        return out
    def gelu_half(x0, step, addr, off):
        out = []
        for g in range(2):
            out += gelu_group([x0 + 8*step + 4*g + j for j in range(4)], V_HP + 4 * step + 2 * g)
        out.append(f'ds_write_b128 v{addr}, {rng(V_HP + 4*step, 4)} offset:{off}')
        return out
    def gelu_tile(buf, i):
        out = []
        for sl in range(2):
            for step in range(2):
                out += gelu_half(acc(buf, sl), step, V_HW + sl, ((2*i if i < 3 else 0) + step) * 1024)
        return out
    def store_stream(x0s):
        out = []
        for x0, sreg in x0s:
            for q in range(2):
                hp = V_HP + 4 * q
                for j in range(4):
                    out.append(f'v_cvt_pk_bf16_f32 v{hp+j}, v{x0+8*q+2*j}, v{x0+8*q+2*j+1}')
                out.append(f'buffer_store_dwordx4 {rng(hp,4)}, v{V_L16}, s[{S_WS}:{S_WS+3}], s{sreg} offen offset:{q*1024}{store_mod}')
        return out
    def xchg_send(x0, addr, offs):
        return [f'ds_write_b128 v{addr}, {rng(x0+4*k,4)} offset:{offs[k]}' for k in range(4)]
    def xchg_recv(dst, addr, offs):
        out = []
        for k in range(4):
            out.append(('xr', f'ds_read_b128 {rng(V_TMP,4)}, v{addr} offset:{offs[k]}'))
            out.append(('gap', 4))
            out.append(('xw', None))
            for j in range(4): out.append(f'v_add_f32 v{dst+4*k+j}, v{dst+4*k+j}, v{V_TMP+j}')
        return out

    fr = dict(n=0)
    def emit_fill(x):
        if isinstance(x, tuple):
            if x[0] == 'xr': e(x[1], lg='xr')
            elif x[0] == 'xw': e.wait_lg('xr')
            return 4
        e(x, vm='st', lg='hw')
        return cost(x)
    def unit(accs, slots, fill, first_c, jit=None, pre=None, pre_at=None, delay=3, barriers=None, fill_until=None):
        ns = len(accs); nm = len(slots) * ns
        fill = list(fill)
        total = sum(4 if isinstance(x, tuple) else cost(x) for x in fill)
        span = (fill_until if fill_until else nm) - delay
        done, gap, hold = 0, 0, 0
        DJ = 4
        barriers = dict(barriers or {})
        pend = [i for i in range(len(slots)) if jit and slots[i] in jit]
        limit = [min([b for b in barriers] + [len(slots)]) if barriers else len(slots)]
        def issue_jit(upto):
            while pend and pend[0] <= upto and pend[0] < limit[0]:
                i = pend.pop(0)
                setup, off = jit[slots[i]]
                if setup is not None:
                    for sl in range(ns): e(f'v_add_u32 v{V_RD+sl}, s{setup}, v{V_BASE+sl}')
                for sl in range(ns):
                    e(f'ds_read_b128 {yreg(sl*36+slots[i])}, v{V_RD+sl} offset:{off}', lg=('y', i))
        def do_barrier(i):
            barriers.pop(i)()
            limit[0] = min([b for b in barriers] + [len(slots)]) if barriers else len(slots)
            issue_jit(i + DJ - 1)
        if 0 in barriers: do_barrier(0)
        else: issue_jit(DJ - 1)
        n0 = fr['n']
        for i, slot in enumerate(slots):
            if i in barriers:
                while fill and fill_until and i * ns >= fill_until: emit_fill(fill.pop(0))
                do_barrier(i)
            n = fr['n']
            if i % G == 0: e.wait_vm(('f', min(n + G - 1, n0 + len(slots) - 1)))
            e.wait_lg(('y', i))
            r = V_RING + 4 * (n % NA)
            for sl in range(ns):
                a = accs[sl]
                c = (first_c if (i == 0 and first_c is not None) else rng(a, 16))
                e(f'v_mfma_f32_32x32x16_bf16 {rng(a,16)}, {rng(r,4)}, {yreg(sl*36+slot)}, {c}')
                gap += 1
                if sl == ns - 1:
                    load_frag()
                    issue_jit(i + DJ)
                    if pre and i == pre_at:
                        for x in pre: e(x, lg='bias')
                if gap >= delay:
                    target = total * min(1.0, (gap - delay + 1) / span)
                    while fill and done < target and gap >= hold:
                        x = fill.pop(0)
                        if isinstance(x, tuple) and x[0] == 'gap':
                            hold = gap + x[1]; continue
                        done += emit_fill(x)
            fr['n'] = n + 1
        for x in fill:
            if not (isinstance(x, tuple) and x[0] == 'gap'): emit_fill(x)

    bias = rng(V_BIAS, 16)
    def ybar(c):
        def f():
            e.wait_vm(('y', c))
            stamp(True)
            if c == 0: e.wait_all(vm=False, lg=True)
            e('s_barrier')
            if c == 0:
                stamp()
                for x in bias_reads(V_BRH, 0): e(x, lg='bias')
        return f
    def ldsbar():
        e.wait_all(vm=False, lg=True)
        e('s_barrier')
    XO1 = [0, 1024, 36864, 36864 + 1024]
    XO2 = [0, 1024, 2048, 3072]
    unit([V_SH, acc(1, 1)], list(range(18)), [], bias, jit={i: (None, i * 1024) for i in range(18)},
         barriers={0: ybar(0), 6: ybar(1), 12: ybar(2)}, pre=bias_reads(V_BR, 0), pre_at=12)
    stamp()
    e.wait_lg('bias')
    unit([acc(0, 0), acc(0, 1)], list(range(36)), xchg_send(acc(1, 1), V_XW, XO1), bias,
         jit={i: (S_O18B if i == 18 else None, (i - 18) * 1024) for i in range(18, 36)}, delay=8, fill_until=24,
         pre=bias_reads(V_BR, 128), pre_at=30)
    ldsbar()
    stamp()
    unit([acc(1, 0), acc(1, 1)], list(range(36)), gelu_tile(0, 0) + xchg_recv(V_SH, V_XR, XO1), bias, pre=bias_reads(V_BR, 256), pre_at=30)
    e.wait_lg('bias')
    unit([acc(0, 0), acc(0, 1)], list(range(36)), gelu_half(V_SH, 0, V_HWH, 0) + gelu_tile(1, 1), bias, pre=bias_reads(V_BR, 384), pre_at=30)
    e.wait_lg('bias')
    unit([acc(1, 0), acc(1, 1)], list(range(36)), gelu_half(V_SH, 1, V_HWH, 1024) + gelu_tile(0, 2), bias)
    e(f'v_add_u32 v{V_HW}, s{S_HW3}, v{V_HW}', f'v_add_u32 v{V_HW+1}, s{S_HW3}, v{V_HW+1}')
    e(f'v_add_u32 v{V_BASE}, {LDS_H}, v{V_BASE}', f'v_add_u32 v{V_BASE+1}, {LDS_H}, v{V_BASE+1}')
    e(f's_lshl_b32 s37, s{S_W}, 12', f'v_add_u32 v{V_XW}, s37, v{V_L16}', f's_xor_b32 s37, s37, 4096', f'v_add_u32 v{V_XR}, s37, v{V_L16}')
    ldsbar()
    stamp()
    jit2 = {}
    for i in range(36):
        if i < 14: jit2[i] = (S_O14A if i == 0 else None, i * 1024)
        elif i < 28: jit2[i] = (S_O14B if i == 14 else None, (i - 14) * 1024)
        elif i < 32: jit2[i] = (S_O28A if i == 28 else None, (i - 28) * 1024)
        else: jit2[i] = (S_O28B if i == 32 else None, (i - 32) * 1024)
    unit([acc(0, 0), acc(0, 1)], list(range(36)), gelu_tile(1, 3), '0', jit=jit2, barriers={28: ldsbar}, fill_until=56)
    stamp()
    adv = [f's_add_u32 s{S_P0}, s{S_P0}, 4096', f's_add_u32 s{S_P1}, s{S_P1}, 4096']
    unit([V_SH, acc(1, 1)], list(range(14)) + list(range(28, 32)), store_stream([(acc(0, 0), S_P0), (acc(0, 1), S_P1)]), '0', delay=4)
    for x in adv: e(x)
    unit([acc(0, 0), acc(0, 1)], list(range(36)), xchg_send(acc(1, 1), V_XW, XO2), '0', delay=8, fill_until=24)
    ldsbar()
    unit([acc(1, 0), acc(1, 1)], list(range(36)),
         store_stream([(acc(0, 0), S_P0), (acc(0, 1), S_P1)]) + xchg_recv(V_SH, V_XR, XO2) + store_stream([(V_SH, S_PH)]), '0')
    for x in adv: e(x)
    unit([acc(0, 0), acc(0, 1)], list(range(36)), store_stream([(acc(1, 0), S_P0), (acc(1, 1), S_P1)]), '0', fill_until=(20 if fuse else None))
    for x in adv: e(x)
    if not fuse:
        for x in store_stream([(acc(0, 0), S_P0), (acc(0, 1), S_P1)]): e(x, vm='st')
    else:
        assert all(t != 'st' for t in e.vm), e.vm
        stamp(pstamps)
        e(f's_load_dwordx2 s[4:5], s[0:1], {Lo.KA["b2"]}', f's_load_dwordx2 s[6:7], s[0:1], {Lo.KA["out"]}')
        e('s_barrier')
        e('s_lshl_b32 s33, s17, 3', 's_add_u32 s46, s33, s16', 's_lshl_b32 s46, s46, 7', f's_add_u32 s46, s46, {Lo.FLG:#x}')
        e('s_lshl_b32 s33, s33, 7', f's_add_u32 s47, s33, {Lo.FLG:#x}')
        e('v_mov_b32 v15, 0')
        def raise_flag(val, lab):
            e(f's_cmp_lg_u32 s{S_W}, 0', f's_cbranch_scc1 {lab}')
            e(f'v_mov_b32 v14, {val}', 's_mov_b64 exec, 1')
            e(f'buffer_store_dword v14, v15, s[{S_WS}:{S_WS+3}], s46 offen sc1')
            e('s_mov_b64 exec, -1')
            e.label(lab)
        sv = list(e.vm)
        raise_flag(1, 'K4_F1')
        e.vm = sv
        for x in store_stream([(acc(0, 0), S_P0), (acc(0, 1), S_P1)]): e(x, vm='st')
        e('s_waitcnt lgkmcnt(0)')
        e.srd(S_B1, 4, 5, Lo.D * 2)
        e.srd(36, 6, 7, Lo.L * Lo.D * 2)
        e('s_mul_i32 s34, s17, 589824', f's_add_u32 s34, s34, {Lo.PART:#x}')
        e(f'v_lshrrev_b32 v2, 4, v{V_L16}', 'v_and_b32 v3, 31, v2', 'v_lshrrev_b32 v4, 5, v2', 'v_lshlrev_b32 v4, 4, v4')
        e('v_mul_u32_u24 v3, 1152, v3', f'v_lshlrev_b32 v5, 3, v{V_L16}')
        PB, XB, AC = 16, 112, 160
        SI = [48, 49, 50]
        def early_idx(dst, i_expr):
            e('s_mul_i32 s40, s16, 7', *i_expr)
            e('s_lshr_b32 s41, s40, 2', 's_mul_hi_u32 s42, s41, 0x55555556', 's_add_u32 s42, s42, s41', 's_add_u32 s43, s41, 4',
              's_cmp_ge_u32 s41, 12', 's_cselect_b32 s42, s43, s42')
            e('s_lshl_b32 s42, s42, 2', 's_and_b32 s40, s40, 3', f's_add_u32 s{dst}, s42, s40')
        early_idx(SI[0], [f's_add_u32 s40, s40, s{S_W}'])
        early_idx(SI[1], [f's_add_u32 s40, s40, s{S_W}', 's_add_u32 s40, s40, 4'])
        early_idx(SI[2], ['s_add_u32 s40, s40, 6'])
        e('s_lshl_b32 s40, s16, 1', f's_add_u32 s40, s40, s{S_W}', 's_sub_u32 s40, s40, 2', 's_lshr_b32 s41, s40, 2', 's_lshl_b32 s41, s41, 4', 's_add_u32 s41, s41, 12',
          's_and_b32 s40, s40, 3', 's_add_u32 s41, s41, s40', f's_cmp_ge_u32 s{S_W}, 2', f's_cselect_b32 s{SI[1]}, s41, s{SI[1]}')
        def side_loads(k):
            i = SI[k]
            e(f's_lshr_b32 s42, s{i}, 2', 's_lshl_b32 s42, s42, 6', f's_and_b32 s43, s{i}, 1', 's_lshl_b32 s43, s43, 5', 's_add_u32 s42, s42, s43')
            e(f's_bfe_u32 s43, s{i}, 0x10001', 's_lshl_b32 s43, s43, 5', 's_lshl_b32 s44, s17, 6', 's_add_u32 s43, s43, s44', 's_mul_i32 s43, s43, 1152', 's_add_u32 s43, s43, s42')
            e(f'v_add_u32 v{6+2*k}, s42, v4')
            e(f'v_add_u32 v{7+2*k}, v3, v4', f'v_add_u32 v{7+2*k}, s43, v{7+2*k}')
            e(f's_mov_b32 s44, {Lo.X2:#x}', f's_mov_b32 s45, {Lo.MODB + 5*576*2:#x}')
            e(f'buffer_load_dwordx4 v[{XB+12*k}:{XB+12*k+3}], v{7+2*k}, s[{S_WS}:{S_WS+3}], s44 offen', vm='side')
            e(f'buffer_load_dwordx4 v[{XB+12*k+4}:{XB+12*k+7}], v{6+2*k}, s[{S_WS}:{S_WS+3}], s45 offen', vm='side')
            e(f'buffer_load_dwordx4 v[{XB+12*k+8}:{XB+12*k+11}], v{6+2*k}, s[{S_B1}:{S_B1+3}], 0 offen', vm='side')
        for k in range(3): side_loads(k)
        stamp('tail')
        def poll(val, lab):
            e('s_mov_b64 exec, 0xff', f's_mov_b32 s35, {spin}')
            e.label(lab)
            e(f'buffer_load_dword v14, v5, s[{S_WS}:{S_WS+3}], s47 offen sc1')
            e('s_waitcnt vmcnt(0)')
            e(f'v_cmp_gt_u32 vcc, {val}, v14')
            e('s_sub_u32 s35, s35, 1', 's_cmp_eq_u32 s35, 0', f's_cbranch_scc1 {lab}_X', 's_nop 0', f's_cbranch_vccnz {lab}')
            e.label(lab + '_X')
            e('s_mov_b64 exec, -1')
            e.vm = []; e.hist = []
        poll(1, 'K4_POLL1')
        stamp('tail')
        e('s_barrier')
        raise_flag(2, 'K4_F2')
        e.vm = []
        stamp(pstamps)
        def frag_loads(k):
            e(f's_lshl_b32 s41, s{SI[k]}, 10', 's_add_u32 s41, s41, s34')
            for sp in range(8):
                e(f'buffer_load_dwordx4 v[{PB+32*k+4*sp}:{PB+32*k+4*sp+3}], v{V_L16}, s[{S_WS}:{S_WS+3}], s41 offen sc1', vm=('p', k))
                if sp < 7: e('s_add_u32 s41, s41, 73728')
        def frag_finish(k):
            e.wait_vm(('p', k))
            for sp in range(8):
                for m in range(4):
                    r = PB + 32*k + 4*sp + m
                    if sp == 0: e(f'v_lshlrev_b32 v{AC+2*m}, 16, v{r}', f'v_and_b32 v{AC+2*m+1}, 0xffff0000, v{r}')
                    else:
                        e(f'v_lshlrev_b32 v12, 16, v{r}', f'v_and_b32 v13, 0xffff0000, v{r}')
                        e(f'v_add_f32 v{AC+2*m}, v{AC+2*m}, v12', f'v_add_f32 v{AC+2*m+1}, v{AC+2*m+1}, v13')
            for j in range(4): e(f'v_permlane32_swap_b32 v{AC+j}, v{AC+4+j}')
            for m in range(4):
                for h in range(2):
                    kk = AC + 2*m + h
                    un = (lambda dst, src: f'v_lshlrev_b32 v{dst}, 16, v{src}') if h == 0 else (lambda dst, src: f'v_and_b32 v{dst}, 0xffff0000, v{src}')
                    e(un(12, XB+12*k+8+m), un(13, XB+12*k+4+m), un(14, XB+12*k+m))
                    e(f'v_add_f32 v{kk}, v{kk}, v12', f'v_fma_f32 v{kk}, v{kk}, v13, v14')
            for m in range(4): e(f'v_cvt_pk_bf16_f32 v{AC+8+m}, v{AC+2*m}, v{AC+2*m+1}')
            e(f'buffer_store_dwordx4 v[{AC+8}:{AC+11}], v{7+2*k}, s[36:39], 0 offen', vm='o')
        frag_loads(0)
        e(f's_cmp_ge_u32 s{S_W}, 2', 's_cbranch_scc1 K4_LATE')
        sv0 = (list(e.vm), list(e.hist))
        frag_loads(1)
        e(f's_cmp_lg_u32 s{S_W}, 0', 's_cbranch_scc1 K4_TWO')
        sv = (list(e.vm), list(e.hist))
        frag_loads(2)
        e.wait_vm(('p', 0)); stamp('tail')
        frag_finish(0); frag_finish(1); frag_finish(2)
        e('s_branch K4_RDONE')
        e.label('K4_TWO')
        e.vm, e.hist = list(sv[0]), list(sv[1])
        frag_finish(0); frag_finish(1)
        e('s_branch K4_RDONE')
        e.label('K4_LATE')
        e.vm, e.hist = list(sv0[0]), list(sv0[1])
        poll(2, 'K4_POLL2')
        frag_loads(1)
        frag_finish(0); frag_finish(1)
        e.label('K4_RDONE')
    if stamps:
        stamp(pstamps)
        e('s_waitcnt vmcnt(0)')
        stamp(pstamps)
        e(f's_load_dwordx2 s[4:5], s[0:1], {Lo.KA["dbg"]}', 's_waitcnt lgkmcnt(0)')
        e.srd(12, 4, 5, 256)
        e('s_cmp_ge_u32 s2, 2', 's_cbranch_scc1 K4_END')
        e('s_lshl_b32 s40, s2, 2', f's_add_u32 s40, s40, s{S_W}', 's_lshl_b32 s40, s40, 5', 'v_mov_b32 v12, s40')
        for i in range(1, nst[0]):
            e(f's_sub_u32 s41, s{56+2*i}, s56', 'v_mov_b32 v13, s41', f'buffer_store_dword v13, v12, s[12:15], 0 offen offset:{4*(i-1)}', vm='dbg')
    e.label('K4_END')
    e('s_endpgm')
    return e

if __name__ == '__main__':
    import asmlib
    e = build()
    errs = asmlib.check(e.lines)
    print('instructions', len(e.lines), 'nops', e.nops, 'hazard errors', len(errs))
    for x in errs[:20]: print(x)
```

```python
import layout as Lo
def apply(name, lines, wg_list, base=72, maxn=7):
    out = [lines[0], f's_memtime s[{base}:{base+1}]', 's_mov_b32 s98, s2', 'v_readfirstlane_b32 s99, v0']
    n = 0
    seen = {}
    last = max(i for i, l in enumerate(lines) if l == 's_endpgm')
    for k in range(1, maxn + 1): out.append(f's_mov_b32 s{base+2*k}, s{base}')
    out.append('s_waitcnt lgkmcnt(0)')
    for k in range(1, maxn + 1): out.append(f's_mov_b32 s{base+2*k}, s{base}')
    for i, l in enumerate(lines[1:], 1):
        if l.startswith('; STAMP'):
            k = int(l.split()[2])
            out.append(f's_memtime s[{base+2*k}:{base+2*k+1}]')
        elif l == 's_endpgm':
            out.append(f's_branch ST_{name}')
            if i == last:
                out += [f'ST_{name}:', 's_waitcnt vmcnt(0) lgkmcnt(0)', f's_memtime s[{base+2*maxn}:{base+2*maxn+1}]', 's_mov_b64 exec, -1',
                        's_cmp_lg_u32 s99, 0', f's_cbranch_scc1 STX_{name}', 's_mov_b32 s90, -1']
                for j, w in enumerate(wg_list):
                    out += [f's_cmp_eq_u32 s98, {w}', f's_cselect_b32 s90, {j}, s90']
                out += ['s_cmp_lt_i32 s90, 0', f's_cbranch_scc1 STX_{name}',
                        f's_load_dwordx2 s[96:97], s[0:1], {Lo.KA["dbg"]}', 's_waitcnt lgkmcnt(0)',
                        's_mov_b32 s92, s96', 's_mov_b32 s93, s97', 's_mov_b32 s94, 256', 's_mov_b32 s95, 0x20000', 's_lshl_b32 s90, s90, 5',
                        'v_mov_b32 v1, s90', 's_mov_b64 exec, 1']
                for k in range(1, maxn + 1):
                    out += [f's_sub_u32 s91, s{base+2*k}, s{base}', 'v_mov_b32 v2, s91', f'buffer_store_dword v2, v1, s[92:95], 0 offen offset:{4*(k-1)}']
                out += ['s_waitcnt vmcnt(0)', f'STX_{name}:', 's_endpgm']
        else:
            out.append(l)
    return out
```

```python
import sys, gen_all, k1_prep, k2_conv, k3_ln2, k5_red
import k4_mlp2 as k4_mlp
TL = [False]
CS = [None]
OPT = {}
def make(k4=None, prefetch=True, stamps=False, order=None, timeline=False, cstamps=None, opt=None):
    OPT.clear(); OPT.update(opt or {})
    TL[0] = timeline
    if order is None: order = (1, 2, 3, 4) if (k4 or {}).get('fuse', True) else (1, 2, 3, 4, 5)
    CS[0] = cstamps
    if not prefetch or 2 not in order:
        return _make(k4, False, stamps, order, 0, 0)
    syms, size = gen_all.symbols(_make(k4, True, stamps, order, 4096, 0))
    span = size - syms[k2_conv.NAME]
    nbytes = (span + 4095) // 4096 * 4096
    return _make(k4, True, stamps, order, nbytes, nbytes - span)

def _make(k4, prefetch, stamps, order, pf_bytes, tail_pad):
    k4 = k4 or {}
    ks = {
     1: (k1_prep.NAME, k1_prep.build(prefetch_from=(k2_conv.NAME if prefetch else None), prefetch_bytes=pf_bytes, R=k4.get('R', 2), **OPT.get('k1', {})), k1_prep.GRID, 256, k1_prep.LDS_BYTES, 72, 80, 72),
     2: (k2_conv.NAME, k2_conv.build(R=k4.get('R', 2), **OPT.get('k2', {})), k2_conv.GRID, 256, k2_conv.LDS_BYTES, 176, 48, 176),
     3: (k3_ln2.NAME, k3_ln2.build(**OPT.get('k3', {})), 256, 256, k3_ln2.LDS_BYTES, 104, 48, 104),
     4: (k4_mlp.NAME, k4_mlp.build(stamps=stamps, **k4), 256, 256, k4_mlp.LDS_BYTES, 512, 80 if stamps else 64, 256),
     5: (k5_red.NAME, k5_red.build(), 576, 256, 0, 80, 48, 80),
    }
    return gen_all.assemble([ks[i] for i in order], tail_pad, TL[0], CS[0])
if __name__ == '__main__':
    open(sys.argv[1], 'w').write(make())
```

```python
import numpy as np
from emit import Em
import layout as Lo
from common import f2h, allreduce16, lo, hi

NAME = 'k1_prep_kernel'
N_KG, N_LN, N_MOD, N_W1 = 576, 128, 27 * Lo.KSPLIT, 216
B_LN, B_MOD = N_KG, N_KG + N_LN
GRID = B_MOD + N_MOD
LDS_BYTES = 4 * 64 * 144 + 2048
LOG2E = 1.4426950408889634

def bf16_round_int(j):
    if j < 256: return j
    s = 1 << (j.bit_length() - 8)
    q, r = divmod(j, s)
    if r * 2 > s or (r * 2 == s and (q & 1)): q += 1
    return q * s

BETA = list(range(16)) + [512, 516, 520, 524, 1024, 1032, 1536, 1544, 1552]
def t_index(pos):
    if pos < 512: return pos >> 4, pos & 15
    if pos < 1024: return (pos - 512) >> 4, 16 + ((pos >> 2) & 3)
    if pos < 1536: return (pos - 1024) >> 4, 20 + ((pos >> 3) & 1)
    if pos < 2048: return (pos - 1536) >> 4, 22 + ((pos >> 3) & 1)
    return 31, 24
def expand_table():
    t = []
    for n in range(2048):
        a, b = t_index(bf16_round_int(2047 - n))
        assert 16 * a + BETA[b] == bf16_round_int(2047 - n)
        t.append(2 * (b * 32 + a))
    return t

def build(prefetch_from=None, prefetch_bytes=0, R=2, sm=' sc1', wpf='', w1m=' sc1'):
    e = Em()
    e.label(NAME)
    e(f's_cmp_ge_u32 s2, {GRID}', 's_cbranch_scc1 K1_END')
    e(f's_load_dwordx2 s[4:5], s[0:1], {Lo.KA["ws"]}')
    e('v_lshrrev_b32 v1, 6, v0', 'v_and_b32 v2, 63, v0')
    e('v_readfirstlane_b32 s20, v1')
    if prefetch_from:
        nch = prefetch_bytes // 4096
        e(f's_cmp_lt_u32 s2, {GRID - 8*nch}', 's_cbranch_scc1 K1_NOPF')
        e('s_getpc_b64 s[30:31]')
        e.label('K1_PC')
        e(f's_add_u32 s30, s30, {prefetch_from}-K1_PC', 's_addc_u32 s31, s31, 0')
        e(f's_sub_u32 s16, s2, {GRID - 8*nch}', 's_lshr_b32 s16, s16, 3', 's_lshl_b32 s16, s16, 12', 's_add_u32 s30, s30, s16', 's_addc_u32 s31, s31, 0')
        e('v_lshlrev_b32 v3, 4, v0', 'v_mov_b32 v5, s31', 'v_add_co_u32 v4, vcc, s30, v3', 'v_addc_co_u32 v5, vcc, 0, v5, vcc')
        e('global_load_dwordx4 v[68:71], v[4:5], off')
        e.label('K1_NOPF')
        e.vm = []
    e(f's_cmp_lt_u32 s2, {B_LN}', 's_cbranch_scc1 K1_KG')
    e(f's_cmp_lt_u32 s2, {B_MOD}', 's_cbranch_scc1 K1_LN')
    e.vm = []; e.lg = []
    e(f's_load_dwordx2 s[6:7], s[0:1], {Lo.KA["wmod"]}', f's_load_dwordx2 s[18:19], s[0:1], {Lo.KA["c"]}')
    e(f's_sub_u32 s21, s2, {B_MOD}', 's_mul_hi_u32 s22, s21, 0x097b425f', 's_mul_i32 s23, s22, 27', 's_sub_u32 s23, s21, s23')
    e('v_lshrrev_b32 v3, 4, v0', 'v_and_b32 v4, 15, v0')
    ROWS = 576 // Lo.KSPLIT; NI = ROWS // 16
    e(f's_mul_i32 s16, s22, {ROWS}', 'v_add_u32 v5, s16, v3')
    e('v_lshlrev_b32 v6, 1, v5')
    e('v_mul_u32_u24 v5, 6912, v5', 'v_lshlrev_b32 v7, 4, v4', 'v_add_u32 v5, v5, v7', 's_lshl_b32 s16, s23, 8')
    e('s_waitcnt lgkmcnt(0)')
    e.srd(8, 4, 5, Lo.WS_END)
    e.srd(12, 6, 7, 576 * 3456 * 2)
    e.srd(24, 18, 19, 576 * 2)
    CR, WR0 = 8, 24
    for i in range(NI):
        e(f'buffer_load_ushort v{CR+i}, v6, s[24:27], 0 offen offset:{32*i}', vm='c')
    def wreg(i): return WR0 + 4 * (i % 8)
    def wload(i):
        e(f'buffer_load_dwordx4 v[{wreg(i)}:{wreg(i)+3}], v5, s[12:15], s16 offen', vm=('w', i))
        e(f's_add_u32 s16, s16, {16*6912}')
    for i in range(min(8, NI)): wload(i)
    e.wait_vm('c')
    for i in range(NI):
        r = CR + i
        e(f'v_lshlrev_b32 v{r}, 16, v{r}', f'v_mul_f32 v21, {f2h(-LOG2E)}, v{r}', 'v_exp_f32 v21, v21', 'v_add_f32 v21, 1.0, v21', 'v_rcp_f32 v21, v21',
          f'v_mul_f32 v21, v{r}, v21', 'v_cvt_pk_bf16_f32 v21, v21, v21', f'v_lshlrev_b32 v{r}, 16, v21')
    ACC = 56
    for i in range(NI):
        e.wait_vm(('w', i))
        for k in range(4):
            r = wreg(i) + k
            e(lo(21, r), hi(22, r))
            if i == 0: e(f'v_mul_f32 v{ACC+2*k}, v{CR}, v21', f'v_mul_f32 v{ACC+2*k+1}, v{CR}, v22')
            else: e(f'v_fmac_f32 v{ACC+2*k}, v{CR+i}, v21', f'v_fmac_f32 v{ACC+2*k+1}, v{CR+i}, v22')
        if i + 8 < NI: wload(i + 8)
    e('v_lshlrev_b32 v5, 9, v3', 'v_lshlrev_b32 v6, 5, v4', 'v_add_u32 v5, v5, v6')
    e(f'ds_write_b128 v5, v[{ACC}:{ACC+3}]', f'ds_write_b128 v5, v[{ACC+4}:{ACC+7}] offset:16')
    e('s_waitcnt lgkmcnt(0)', 's_barrier')
    e.lg = []
    e('v_cmp_gt_u32 vcc, 128, v0', 's_and_saveexec_b64 s[28:29], vcc', 's_cbranch_execz K1_END')
    e('v_lshlrev_b32 v5, 2, v0')
    for i in range(16):
        e(f'ds_read_b32 v{20+i}, v5 offset:{512*i}', lg=('r', i))
        if i == 11: e.wait_lg(('r', 3))
    e('s_waitcnt lgkmcnt(0)')
    for i in range(1, 16): e(f'v_add_f32 v20, v20, v{20+i}')
    e('s_mul_i32 s16, s22, 13824', 's_lshl_b32 s17, s23, 9', 's_add_u32 s16, s16, s17', f's_add_u32 s16, s16, {Lo.MODP:#x}')
    e(f'buffer_store_dword v20, v5, s[8:11], s16 offen{sm}', vm='o')
    e('s_endpgm')
    e.label('K1_LN'); e.hist = []; e.vm = []; e.lg = []
    e(f's_load_dwordx2 s[6:7], s[0:1], {Lo.KA["u"]}')
    e(f's_sub_u32 s21, s2, {B_LN}')
    e('v_lshrrev_b32 v3, 4, v0', 'v_and_b32 v4, 15, v0')
    e('s_lshl_b32 s16, s21, 4', 'v_add_u32 v5, s16, v3', 'v_mul_u32_u24 v5, 1152, v5', 'v_lshlrev_b32 v6, 3, v4', 'v_add_u32 v5, v5, v6')
    e('v_mul_u32_u24 v7, 1184, v3', 'v_add_u32 v7, v7, v6')
    e('s_waitcnt lgkmcnt(0)')
    e.srd(8, 4, 5, Lo.WS_END)
    e.srd(12, 6, 7, Lo.L * Lo.D * 2)
    X, V = 8, 26
    for i in range(9):
        e(f'buffer_load_dwordx2 v[{X+2*i}:{X+2*i+1}], v5, s[12:15], 0 offen offset:{128*i}', vm=('x', i))
    for i in range(9):
        if i == 0: e.comment('STAMP 1')
        e.wait_vm(('x', i))
        if i in (0, 8): e.comment(f'STAMP {2 if i == 0 else 3}')
        for k in range(2):
            e(lo(V+4*i+2*k, X+2*i+k), hi(V+4*i+2*k+1, X+2*i+k))
    e(f'v_add_f32 v62, v{V}, v{V+1}')
    for k in range(2, 36): e(f'v_add_f32 v62, v62, v{V+k}')
    allreduce16(e, 62)
    e(f'v_mul_f32 v62, {f2h(1/576)}, v62')
    for k in range(36): e(f'v_sub_f32 v{V+k}, v{V+k}, v62')
    e(f'v_mul_f32 v62, v{V}, v{V}')
    for k in range(1, 36): e(f'v_fmac_f32 v62, v{V+k}, v{V+k}')
    allreduce16(e, 62)
    e(f'v_mul_f32 v62, {f2h(1/576)}, v62', f'v_add_f32 v62, {f2h(1e-5)}, v62', 'v_rsq_f32 v62, v62')
    RAW = 16 * 1184
    for i in range(9):
        e(f'ds_write_b64 v7, v[{X+2*i}:{X+2*i+1}] offset:{RAW + 128*i}', lg='w')
    for i in range(9):
        for k in range(2):
            e(f'v_mul_f32 v63, v62, v{V+4*i+2*k}', f'v_mul_f32 v64, v62, v{V+4*i+2*k+1}', f'v_cvt_pk_bf16_f32 v{V+2*i+k}, v63, v64')
        e(f'ds_write_b64 v7, v[{V+2*i}:{V+2*i+1}] offset:{128*i}', lg='w')
        if i == 3: e('s_waitcnt lgkmcnt(4)')
    e('v_lshrrev_b32 v3, 4, v2', 'v_lshlrev_b32 v3, 2, v3', 'v_bfe_u32 v4, v2, 2, 2', 'v_add_u32 v3, v3, v4', 'v_mul_u32_u24 v3, 1184, v3',
      'v_and_b32 v4, 3, v2', 'v_lshlrev_b32 v4, 3, v4', 'v_add_u32 v3, v3, v4', 's_mul_i32 s16, s20, 288', 'v_add_u32 v3, s16, v3')
    e('v_and_b32 v4, 15, v2', 'v_lshlrev_b32 v4, 5, v4', 'v_lshrrev_b32 v5, 4, v2', 'v_lshlrev_b32 v5, 3, v5', 'v_add_u32 v4, v4, v5')
    e('s_mul_i32 s16, s21, 18432', 's_mul_i32 s17, s20, 4608', 's_add_u32 s16, s16, s17', f's_add_u32 s16, s16, {Lo.XT:#x}')
    e('s_waitcnt lgkmcnt(0)', 's_barrier')
    e.lg = []
    e(f's_add_u32 s18, s16, {Lo.XR - Lo.XT:#x}')
    for part, (off, sreg) in enumerate(((0, 16), (RAW, 18))):
        for q in range(9):
            e(f'ds_read_b64_tr_b16 v[{X+18*part+2*q}:{X+18*part+2*q+1}], v3 offset:{off + 32*q}', lg=('t', part, q))
        for q in range(9):
            e.wait_lg(('t', part, q))
            if q == 8: e(f's_add_u32 s{sreg}, s{sreg}, 4096')
            e(f'buffer_store_dwordx2 v[{X+18*part+2*q}:{X+18*part+2*q+1}], v4, s[8:11], s{sreg} offen offset:{(512*q) % 4096}{sm}', vm='o')
    e('s_endpgm')
    e.label('K1_KG'); e.hist = []; e.vm = []; e.lg = []
    PITCH = 144
    TA, TB, WST = 0, 32 * PITCH, 64 * PITCH
    TT = 4 * WST
    e(f's_load_dwordx8 s[36:43], s[0:1], {Lo.KA["logA"]}', f's_load_dwordx2 s[44:45], s[0:1], {Lo.KA["logdt"]}')
    if wpf: e(f's_load_dwordx2 s[46:47], s[0:1], {Lo.KA["w1"]}', f's_load_dwordx2 s[28:29], s[0:1], {Lo.KA["w2"]}')
    e('s_mov_b32 s21, s2')
    e('s_getpc_b64 s[30:31]')
    e.label('K1_PC2')
    e('s_add_u32 s30, s30, K1_TABLE-K1_PC2', 's_addc_u32 s31, s31, 0')
    e('v_lshlrev_b32 v3, 4, v0', 'v_mov_b32 v5, s31', 'v_add_co_u32 v4, vcc, s30, v3', 'v_addc_co_u32 v5, vcc, 0, v5, vcc')
    e('v_and_b32 v6, 31, v2', 's_lshl_b32 s16, s20, 5', 'v_add_u32 v7, s16, v6', 'v_lshlrev_b32 v7, 1, v7', 's_lshl_b32 s16, s21, 8')
    e('s_waitcnt lgkmcnt(0)')
    e.srd(8, 4, 5, Lo.WS_END)
    for k in range(4):
        e.srd(48 + 4*k, 36 + 2*k, 37 + 2*k, 576 * 128 * 2)
        e(f'buffer_load_ushort v{8+k}, v7, s[{48+4*k}:{51+4*k}], s16 offen', vm='p')
    e.srd(64, 44, 45, 576 * 2)
    e('s_lshl_b32 s17, s21, 1', 'v_mov_b32 v12, 0')
    e('buffer_load_ushort v12, v12, s[64:67], s17 offen', vm='p')
    e('global_load_dwordx4 v[64:67], v[4:5], off', vm='tab')
    e('v_lshrrev_b32 v13, 5, v2')
    e('v_cmp_eq_u32 vcc, 0, v13')
    def sel(dst, p0, p1):
        e(f'v_mov_b32 v{dst}, {f2h(float(p1))}', f'v_mov_b32 v14, {f2h(float(p0))}', f'v_cndmask_b32 v{dst}, v{dst}, v14, vcc')
    P_A0, P_B0, P_M4, P_M8, P_J1, P_J2 = 16, 17, 18, 19, 20, 21
    sel(P_A0, 0, 256); sel(P_B0, 0, 512); sel(P_M4, 1, 4); sel(P_M8, 1, 8); sel(P_J1, 1, 500); sel(P_J2, 1, 504)
    e(f'v_mul_u32_u24 v15, {16*PITCH}, v13', 'v_lshlrev_b32 v14, 2, v6', 'v_add_u32 v15, v15, v14', f's_mul_i32 s16, s20, {WST}', 'v_add_u32 v15, s16, v15')
    e.wait_vm('p')
    if wpf:
        e('s_mul_i32 s17, s21, 9216', 'v_lshlrev_b32 v69, 7, v0', 'v_cmp_gt_u32 vcc, 72, v0', 's_and_saveexec_b64 s[34:35], vcc')
        if 'w1' in wpf:
            e.srd(68, 46, 47, Lo.F * Lo.D * 2)
            e('buffer_load_dword v70, v69, s[68:71], s17 offen', vm='pf')
        if 'w2' in wpf:
            e.srd(68, 28, 29, Lo.F * Lo.D * 2)
            e('buffer_load_dword v70, v69, s[68:71], s17 offen', vm='pf')
        e('s_mov_b64 exec, s[34:35]')
    e('v_lshlrev_b32 v12, 16, v12', f'v_mul_f32 v12, {f2h(LOG2E)}, v12', 'v_exp_f32 v12, v12', 'v_cvt_pk_bf16_f32 v12, v12, v12', 'v_lshlrev_b32 v12, 16, v12')
    for k in range(4): e(f'v_lshlrev_b32 v{8+k}, 16, v{8+k}')
    e(f'v_mul_f32 v8, {f2h(LOG2E)}, v8', 'v_exp_f32 v8, v8', 'v_cvt_pk_bf16_f32 v8, v8, v8', 'v_lshlrev_b32 v8, 16, v8')
    e('v_mul_f32 v8, v8, v12', f'v_mul_f32 v8, {f2h(-LOG2E)}, v8')
    e('v_mul_f32 v9, v9, v12', f'v_mul_f32 v9, {f2h(1/(2*np.pi))}, v9')
    e('v_mul_f32 v10, v10, v12', 'v_mul_f32 v10, 2.0, v10', 'v_mul_f32 v11, v11, v12', 'v_mul_f32 v11, 2.0, v11')
    def cexp(re, im, p):
        return [f'v_mul_f32 v{re}, {p}, v8', f'v_mul_f32 v{im}, {p}, v9', f'v_exp_f32 v{re}, v{re}', f'v_fract_f32 v{im}, v{im}',
                f'v_cos_f32 v60, v{im}', f'v_sin_f32 v{im}, v{im}', f'v_mul_f32 v61, v{re}, v60', f'v_mul_f32 v{im}, v{re}, v{im}', f'v_mov_b32 v{re}, v61']
    AR, AI, BR, BI, WR, WI = 22, 23, 24, 25, 26, 27
    M4, M8, J1, J2 = 28, 30, 32, 34
    for (r, p) in ((AR, f'v{P_A0}'), (BR, f'v{P_B0}'), (WR, f2h(16.0)), (M4, f'v{P_M4}'), (M8, f'v{P_M8}'), (J1, f'v{P_J1}'), (J2, f'v{P_J2}')):
        for x in cexp(r, r + 1, p): e(x)
    e(f'v_mul_f32 v36, v10, v{AR}', f'v_mul_f32 v37, v10, v{AI}')
    e(f'v_fma_f32 v38, -v11, v{AI}, v36', f'v_fma_f32 v{AI}, v11, v{AR}, v37', f'v_mov_b32 v{AR}, v38')
    mults = [M4, M4, M4, J1, M8, J2, M8, M8] + [M8] * 7
    for i in range(16):
        e(f'v_cvt_pk_bf16_f32 v36, v{AR}, v{AI}', f'v_cvt_pk_bf16_f32 v37, v{BR}, -v{BI}')
        e(f'ds_write_b32 v15, v36 offset:{TA + PITCH*i}', f'ds_write_b32 v15, v37 offset:{TB + PITCH*i}')
        if i < 15:
            m = mults[i]
            e(f'v_mul_f32 v38, v{AI}, v{WI}', f'v_mul_f32 v39, v{AI}, v{WR}', f'v_mul_f32 v40, v{BI}, v{m+1}', f'v_mul_f32 v41, v{BI}, v{m}')
            e(f'v_fma_f32 v39, v{AR}, v{WI}, v39', f'v_fma_f32 v41, v{BR}, v{m+1}, v41')
            e(f'v_fma_f32 v{AR}, v{AR}, v{WR}, -v38', f'v_fma_f32 v{BR}, v{BR}, v{m}, -v40')
            e(f'v_mov_b32 v{AI}, v39', f'v_mov_b32 v{BI}, v41')
    e(f'v_mul_u32_u24 v14, {PITCH}, v6', 'v_lshlrev_b32 v13, 4, v13', 'v_add_u32 v14, v14, v13', f's_mul_i32 s16, s20, {WST}', 'v_add_u32 v14, s16, v14')
    ACC = 48
    e('s_waitcnt lgkmcnt(0)')
    e.lg = []
    for ks in range(4):
        e(f'ds_read_b128 v[{16+8*ks}:{19+8*ks}], v14 offset:{TA+32*ks}', f'ds_read_b128 v[{20+8*ks}:{23+8*ks}], v14 offset:{TB+32*ks}', lg=('f', ks))
    for ks in range(4):
        e.wait_lg(('f', ks))
        c = '0' if ks == 0 else f'v[{ACC}:{ACC+15}]'
        e(f'v_mfma_f32_32x32x16_bf16 v[{ACC}:{ACC+15}], v[{16+8*ks}:{19+8*ks}], v[{20+8*ks}:{23+8*ks}], {c}')
    e('v_lshlrev_b32 v3, 4, v2', f's_mul_i32 s16, s20, {WST}', 'v_add_u32 v4, s16, v3')
    for q in range(4):
        e(f'ds_write_b128 v4, v[{ACC+4*q}:{ACC+4*q+3}] offset:{1024*q}', lg='w')
    e('s_lshl_b32 s16, s20, 10', 'v_add_u32 v4, s16, v3')
    e('s_waitcnt lgkmcnt(0)', 's_barrier')
    e.lg = []
    for w in range(4):
        e(f'ds_read_b128 v[{12+4*w}:{15+4*w}], v4 offset:{WST*w}', lg='r')
    e('v_and_b32 v5, 31, v2', 'v_lshlrev_b32 v5, 6, v5', 'v_lshrrev_b32 v6, 5, v2', 'v_lshlrev_b32 v6, 3, v6', 'v_add_u32 v5, v5, v6', 's_lshl_b32 s16, s20, 4', 'v_add_u32 v5, s16, v5')
    e('s_waitcnt lgkmcnt(0)')
    e.lg = []
    for k in range(4):
        e(f'v_add_f32 v{12+k}, v{12+k}, v{16+k}', f'v_add_f32 v{20+k}, v{20+k}, v{24+k}')
    for k in range(4):
        e(f'v_add_f32 v{12+k}, v{12+k}, v{20+k}')
    e('v_cvt_pk_bf16_f32 v12, v12, v13', 'v_cvt_pk_bf16_f32 v13, v14, v15')
    e(f'ds_write_b64 v5, v[12:13] offset:{TT}')
    e.wait_vm('tab')
    for k in range(4):
        e(f'v_and_b32 v{12+2*k}, 0xffff, v{64+k}', f'v_lshrrev_b32 v{13+2*k}, 16, v{64+k}')
    e('s_waitcnt lgkmcnt(0)', 's_barrier')
    e.lg = []
    for k in range(8):
        e(f'ds_read_u16 v{24+k}, v{12+k} offset:{TT}')
    e('v_lshlrev_b32 v3, 4, v0', 's_lshl_b32 s16, s21, 12', f's_add_u32 s16, s16, {Lo.KREV:#x}')
    e('s_waitcnt lgkmcnt(0)')
    for k in range(4):
        e(f'v_lshl_or_b32 v{20+k}, v{25+2*k}, 16, v{24+2*k}')
    e(f'buffer_store_dwordx4 v[20:23], v3, s[8:11], s16 offen{sm}', vm='o')
    e.label('K1_END')
    e('s_endpgm')
    e.raw('.p2align 6')
    e.label('K1_TABLE')
    t = expand_table()
    for i in range(0, 2048, 16):
        e.raw('.short ' + ', '.join(str(x) for x in t[i:i+16]))
    return e

if __name__ == '__main__':
    import asmlib
    e = build()
    errs = asmlib.check(e.lines)
    print('instructions', len(e.lines), 'nops', e.nops, 'hazard errors', len(errs))
    for x in errs[:20]: print(x)
```

```python
from emit import Em
import layout as Lo
from common import f2h, lo, hi

NAME = 'k2_conv_kernel'
HZ, KE, KO, WSTR = 0, 4608, 4608 + 4160, 13120
XRS = 4 * WSTR
W2T = XRS + 16384
W1T = W2T + 36864
LDS_BYTES = W1T + 36864
NCONV = 144
GRID = NCONV

def build(R=4, sm=' sc1', wm=' sc1', pf_label=None, pf_bytes=0, skip_w2=False, DMA_AT=(4, 16, 28), W1_AT=4):
    e = Em()
    e.label(NAME)
    e(f's_cmp_ge_u32 s2, {GRID}', 's_cbranch_scc1 K2_END')
    e(f's_load_dwordx2 s[4:5], s[0:1], {Lo.KA["ws"]}')
    e('v_lshrrev_b32 v1, 6, v0', 'v_and_b32 v2, 63, v0')
    e('v_readfirstlane_b32 s20, v1')
    e(f's_load_dwordx2 s[6:7], s[0:1], {Lo.KA["Dskip"]}')
    e(f's_load_dwordx2 s[40:41], s[0:1], {Lo.KA["w1"]}', f's_load_dwordx2 s[42:43], s[0:1], {Lo.KA["w2"]}')
    e('s_lshl_b32 s21, s2, 2', 's_add_u32 s21, s21, s20')
    e(f's_mul_i32 s22, s20, {WSTR}')
    e('s_waitcnt lgkmcnt(0)')
    e.srd(8, 4, 5, Lo.WS_END)
    e.srd(12, 6, 7, Lo.D * 2)
    e('s_lshl_b32 s16, s21, 1', 'v_mov_b32 v15, 0')
    e('buffer_load_ushort v68, v15, s[12:15], s16 offen', vm='mod')
    e('v_and_b32 v3, 3, v2', 'v_mul_u32_u24 v3, 13824, v3', 'v_lshrrev_b32 v4, 2, v2', 'v_mul_u32_u24 v5, 2304, v4', 'v_add_u32 v3, v3, v5')
    e('s_lshl_b32 s16, s21, 2', f's_add_u32 s16, s16, {Lo.MODP:#x}')
    e('buffer_load_dword v6, v3, s[8:11], s16 offen', vm='mod')
    e('v_lshrrev_b32 v3, 3, v2', 'v_mul_u32_u24 v3, 18432, v3', 'v_and_b32 v5, 7, v2', 'v_lshlrev_b32 v5, 4, v5', 'v_add_u32 v3, v3, v5')
    e(f's_mul_i32 s16, s20, {32*18432}', 's_lshl_b32 s17, s2, 7', 's_add_u32 s16, s16, s17', f's_add_u32 s17, s16, {Lo.XR:#x}', f's_add_u32 s16, s16, {Lo.XT:#x}')
    e(f's_add_u32 s27, s22, {KE}', 's_lshl_b32 s28, s20, 12', f's_add_u32 s28, s28, {XRS}')
    for q in range(4):
        e('s_mov_b32 m0, s27')
        e('buffer_load_dwordx4 v3, s[8:11], s16 offen lds', vm='x')
        if q < 3: e(f's_add_u32 s16, s16, {8*18432}', 's_add_u32 s27, s27, 1024')
    XR, EA, EB = 16, 32, 48
    e('v_lshlrev_b32 v7, 4, v2')
    e('s_lshl_b32 s16, s21, 12', f's_add_u32 s16, s16, {Lo.KREV:#x}')
    for u in range(4):
        e(f'buffer_load_dwordx4 v[{EA+4*u}:{EA+4*u+3}], v7, s[8:11], s16 offen offset:{1024*u}', vm='k')
        e(f'buffer_load_dwordx4 v[{EB+4*u}:{EB+4*u+3}], v7, s[8:11], s16 offen offset:{1024*u+4}', vm='k')
    for q in range(4):
        e('s_mov_b32 m0, s28')
        e('buffer_load_dwordx4 v3, s[8:11], s17 offen lds', vm='xr')
        if q < 3: e(f's_add_u32 s17, s17, {8*18432}', 's_add_u32 s28, s28, 1024')
    e('v_mov_b32 v64, 0', 'v_mov_b32 v65, 0', 'v_mov_b32 v66, 0', 'v_mov_b32 v67, 0')
    e('v_add_u32 v8, s22, v7')
    e('s_mov_b32 exec_hi, 0')
    e(f'ds_write_b128 v8, v[64:67] offset:{HZ}', lg='z')
    e('s_mov_b64 exec, -1')
    e.wait_vm('mod')
    if Lo.KSPLIT < 4:
        e('v_and_b32 v9, 3, v2', f'v_cmp_gt_u32 vcc, {Lo.KSPLIT}, v9', 'v_cndmask_b32 v6, 0, v6, vcc')
    e('v_add_f32_dpp v6, v6, v6 quad_perm:[1,0,3,2] row_mask:0xf bank_mask:0xf', 'v_add_f32_dpp v6, v6, v6 quad_perm:[2,3,0,1] row_mask:0xf bank_mask:0xf')
    e('v_cvt_pk_bf16_f32 v6, v6, v6', 'v_lshlrev_b32 v9, 16, v6')
    e('v_add_f32 v10, 1.0, v9', 'v_cvt_pk_bf16_f32 v10, v10, v10')
    e('v_lshlrev_b32 v11, 16, v10')
    e('v_readlane_b32 s24, v9, 0', 'v_readlane_b32 s25, v11, 4')
    e('v_readfirstlane_b32 s23, v68', 's_lshl_b32 s23, s23, 16')
    e('v_readlane_b32 s26, v9, 8')
    e('v_mul_u32_u24 v5, 1152, v4', 's_lshl_b32 s16, s21, 1', f's_add_u32 s16, s16, {Lo.MODB:#x}')
    e('s_mov_b64 exec, 0x111111')
    e('buffer_store_short v6, v5, s[8:11], s16 offen', vm='ms')
    e('s_mov_b64 exec, -1')
    e('s_lshl_b32 s16, s2, 8', f's_add_u32 s16, s16, {Lo.FLG:#x}', 'v_lshlrev_b32 v12, 7, v2', 'v_mov_b32 v15, 0')
    e('s_cmp_lg_u32 s20, 0', 's_cbranch_scc1 K2_NOCLR', 's_cmp_ge_u32 s2, 128', 's_cbranch_scc1 K2_NOCLR')
    sv = list(e.vm)
    e('s_mov_b64 exec, 3')
    e('v_mov_b32 v14, 0', 'buffer_store_dwordx2 v[14:15], v12, s[8:11], s16 offen sc1')
    e('s_mov_b64 exec, -1')
    e.label('K2_NOCLR')
    e.vm = sv
    e('v_mov_b32 v14, s24')
    e('v_lshrrev_b32 v10, 1, v2', 'v_lshlrev_b32 v10, 7, v10', 'v_and_b32 v11, 1, v2', 'v_lshlrev_b32 v11, 4, v11', 'v_add_u32 v10, v10, v11', 's_lshl_b32 s16, s20, 5', 'v_add_u32 v15, s16, v10')
    e.wait_vm('x')
    e('s_barrier')
    for u in range(4):
        e(f'ds_read_b128 v[{XR+4*u}:{XR+4*u+3}], v15 offset:{u*WSTR + KE}', lg=('xs', u))
    for u in range(4):
        e.wait_lg(('xs', u))
        for k in range(4):
            r = XR + 4*u + k
            e(lo(10, r), hi(11, r), 'v_fma_f32 v10, v10, s25, v14', 'v_fma_f32 v11, v11, s25, v14', f'v_cvt_pk_bf16_f32 v{r}, v10, v11')
        e(f'ds_write_b128 v8, v[{XR+4*u}:{XR+4*u+3}] offset:{HZ+512+1024*u}', lg='h')
    e('s_barrier')
    e('s_mov_b64 exec, 3')
    e(f'ds_write_b128 v8, v[64:67] offset:{KE+4096}', lg='z')
    e(f'ds_write_b128 v8, v[64:67] offset:{KO+4096}', lg='z')
    e('s_mov_b64 exec, -1')
    e('s_waitcnt lgkmcnt(2)')
    e.wait_vm('k')
    e('v_cmp_eq_u32 vcc, 63, v2', 'v_mov_b32 v10, -1', 'v_mov_b32 v11, 0xffff', 'v_cndmask_b32 v10, v10, v11, vcc')
    for u in range(4):
        e(f'ds_write_b128 v8, v[{EA+4*u}:{EA+4*u+3}] offset:{KE+1024*u}', lg='k')
        for k in range(4):
            e(f'v_alignbit_b32 v{EB+4*u+k}, v{EB+4*u+k}, v{EA+4*u+k}, 16')
        if u == 3: e(f'v_and_b32 v{EB+15}, v{EB+15}, v10')
        e(f'ds_write_b128 v8, v[{EB+4*u}:{EB+4*u+3}] offset:{KO+1024*u}', lg='k')
    e('v_and_b32 v3, 15, v2', 'v_lshrrev_b32 v4, 4, v2')
    VB, VA, VE = 5, 10, 9
    e(f'v_lshlrev_b32 v{VB}, 5, v3', 'v_lshlrev_b32 v6, 4, v4', f'v_add_u32 v{VB}, v{VB}, v6', f's_add_u32 s16, s22, {HZ+480}', f'v_add_u32 v{VB}, s16, v{VB}')
    e(f'v_lshlrev_b32 v{VE}, 5, v3', 'v_lshlrev_b32 v14, 3, v4', f'v_add_u32 v{VE}, v{VE}, v14', f'v_add_u32 v{VE}, s22, v{VE}')
    e('v_sub_u32 v14, 2031, v3', 'v_lshrrev_b32 v14, 1, v14', 'v_lshlrev_b32 v14, 2, v14', 'v_add_u32 v14, v14, v6')
    e('v_and_b32 v15, 1, v3', f'v_mul_u32_u24 v15, {KO-KE}, v15', f'v_sub_u32 v15, {KO}, v15', 'v_add_u32 v14, v14, v15', 'v_add_u32 v14, s22, v14')
    for q in range(4):
        e(f'v_subrev_u32 v{VA+q}, {512*(2*q+1)}, v14')
    ACC = 16
    SA, SB = [48, 112], [80, 144]
    for t in range(32): e(f'v_mov_b32 v{ACC+t}, 0')
    def reads(st):
        out = []
        for p in range(8):
            out.append(f'ds_read_b128 v[{SB[st]+4*p}:{SB[st]+4*p+3}], v{VB} offset:{512*p}')
            q, odd = p >> 1, p & 1
            o = 0 if odd else 128
            out.append(f'ds_read2_b32 v[{SA[st]+4*p}:{SA[st]+4*p+1}], v{VA+q} offset0:{o} offset1:{o+1}')
            out.append(f'ds_read2_b32 v[{SA[st]+4*p+2}:{SA[st]+4*p+3}], v{VA+q} offset0:{o+2} offset1:{o+3}')
        return out
    def step():
        return [f'v_subrev_u32 v{VB}, 64, v{VB}'] + [f'v_subrev_u32 v{VA+q}, 64, v{VA+q}' for q in range(4)]
    e.srd(44, 40, 41, Lo.F * Lo.D * 2)
    e.srd(48, 42, 43, Lo.F * Lo.D * 2)
    def xcd_split(src):
        if R != 2: e(f's_and_b32 s30, {src}, 7')
        else: e(f's_and_b32 s30, {src}, 3', 's_lshl_b32 s30, s30, 1', f's_bfe_u32 s16, {src}, 0x10002', 's_add_u32 s30, s30, s16')
    xcd_split('s2')
    e('s_lshr_b32 s31, s2, 3')
    e('s_mul_i32 s36, s30, 18', 's_add_u32 s36, s36, s31', 's_mul_i32 s36, s36, 36864', 's_mul_i32 s37, s20, 9216', 's_add_u32 s36, s36, s37', f's_add_u32 s37, s37, {W2T}')
    e('v_lshrrev_b32 v180, 3, v2', 'v_mul_u32_u24 v180, 9216, v180', 'v_and_b32 v70, 7, v2', 'v_lshlrev_b32 v70, 4, v70', 'v_add_u32 v180, v180, v70')
    e('s_lshr_b32 s32, s31, 1', 's_and_b32 s33, s31, 1', 's_mul_i32 s38, s33, 288', 's_mul_i32 s17, s20, 72', 's_add_u32 s38, s38, s17', 's_mul_i32 s38, s38, 9216',
      's_mul_i32 s17, s30, 1152', 's_add_u32 s38, s38, s17', 's_lshl_b32 s17, s32, 7', 's_add_u32 s38, s38, s17', 's_mul_i32 s39, s20, 9216', f's_add_u32 s39, s39, {W1T}')
    e('v_lshrrev_b32 v69, 5, v2', 'v_lshlrev_b32 v69, 2, v69', 'v_bfe_u32 v71, v2, 2, 2', 'v_add_u32 v69, v69, v71', 'v_mul_u32_u24 v182, 1152, v69',
      'v_bfe_u32 v70, v2, 4, 1', 'v_lshlrev_b32 v70, 5, v70', 'v_and_b32 v71, 3, v2', 'v_lshlrev_b32 v71, 3, v71', 'v_add_u32 v70, v70, v71', 'v_add_u32 v182, v182, v70')
    e('s_and_b32 s54, s20, 1', 's_lshr_b32 s55, s20, 1', 's_mul_i32 s16, s54, 18432', 's_mul_i32 s17, s55, 576', 's_add_u32 s16, s16, s17', f's_add_u32 s16, s16, {W2T}', 'v_add_u32 v182, s16, v182')
    e('s_lshr_b32 s16, s31, 2', 's_and_b32 s17, s31, 3', 's_mul_i32 s56, s16, 3', 's_add_u32 s56, s56, s17', 's_add_u32 s16, s16, 14',
      's_cmp_eq_u32 s17, 3', 's_cselect_b32 s56, s16, s56', 's_sub_u32 s16, s31, 4', 's_cmp_ge_u32 s31, 16', 's_cselect_b32 s56, s16, s56')
    e('s_mul_i32 s16, s30, 18', 's_mul_i32 s17, s55, 9', 's_add_u32 s16, s16, s17', 's_mul_i32 s16, s16, 36', 's_lshl_b32 s17, s56, 1', 's_add_u32 s16, s16, s17',
      's_add_u32 s16, s16, s54', 's_lshl_b32 s16, s16, 10', f's_add_u32 s52, s16, {Lo.W2F:#x}')
    e('v_lshrrev_b32 v69, 5, v2', 'v_lshlrev_b32 v69, 3, v69', 'v_bfe_u32 v71, v2, 2, 2', 'v_add_u32 v69, v69, v71', 'v_lshlrev_b32 v69, 7, v69', 'v_add_u32 v181, v69, v70')
    e('s_lshl_b32 s17, s54, 6', 's_mul_i32 s18, s55, 18432', 's_add_u32 s17, s17, s18', f's_add_u32 s17, s17, {W1T}', 'v_add_u32 v181, s17, v181')
    e('s_mul_i32 s17, s30, 18', 's_lshl_b32 s18, s32, 1', 's_add_u32 s17, s17, s18', 's_add_u32 s17, s17, s54', 's_mul_i32 s17, s17, 36',
      's_mul_i32 s18, s33, 18', 's_add_u32 s17, s17, s18', 's_mul_i32 s18, s55, 9', 's_add_u32 s17, s17, s18', 's_lshl_b32 s17, s17, 10', f's_add_u32 s53, s17, {Lo.W1F:#x}')
    dma = []
    for q in range(9):
        dma.append(('w1', ['s_mov_b32 m0, s39', 'buffer_load_dwordx4 v180, s[44:47], s38 offen lds', f's_add_u32 s38, s38, {8*9216}', 's_add_u32 s39, s39, 1024']))
    for j in range(9):
        dma.append(('w2', ['s_mov_b32 m0, s37', 'buffer_load_dwordx4 v7, s[48:51], s36 offen lds', 's_add_u32 s36, s36, 1024', 's_add_u32 s37, s37, 1024']))
    JR = 184
    def job_read(kind, q, slot):
        r = JR + 4 * slot
        if kind == 'w1': return [f'ds_read_b64_tr_b16 v[{r}:{r+1}], v181 offset:{2048*q}', f'ds_read_b64_tr_b16 v[{r+2}:{r+3}], v181 offset:{2048*q+512}']
        return [f'ds_read_b64_tr_b16 v[{r}:{r+1}], v182 offset:{64*q}', f'ds_read_b64_tr_b16 v[{r+2}:{r+3}], v182 offset:{9216+64*q}']
    def job_store(kind, slot):
        r = JR + 4 * slot
        if kind == 'w1': return [f'buffer_store_dwordx4 v[{r}:{r+3}], v183, s[8:11], s53 offen{wm}', 's_add_u32 s53, s53, 1024']
        return [f'buffer_store_dwordx4 v[{r}:{r+3}], v183, s[8:11], s52 offen{wm}', 's_add_u32 s52, s52, 36864']
    e('v_lshlrev_b32 v183, 4, v2')
    if pf_label:
        nch = pf_bytes // 4096
        e(f's_cmp_ge_u32 s2, {8*nch}', 's_cbranch_scc1 K2_NOPF')
        sv = list(e.vm)
        e('s_getpc_b64 s[34:35]')
        e.label('K2_PC')
        e(f's_add_u32 s34, s34, {pf_label}-K2_PC', 's_addc_u32 s35, s35, 0')
        e('s_lshr_b32 s16, s2, 3', 's_lshl_b32 s16, s16, 12', 's_add_u32 s34, s34, s16', 's_addc_u32 s35, s35, 0')
        e('v_lshlrev_b32 v70, 4, v0', 'v_mov_b32 v71, s35', 'v_add_co_u32 v70, vcc, s34, v70', 'v_addc_co_u32 v71, vcc, 0, v71, vcc')
        e('global_load_dwordx4 v[176:179], v[70:71], off')
        e.label('K2_NOPF')
        e.vm = sv
    e('s_waitcnt lgkmcnt(0)')
    e.lg = []
    for x in reads(0): e(x)
    for x in step(): e(x)
    pend_store = []
    w1_next = [0]
    for r in range(8):
        st = r & 1
        if r == W1_AT:
            e.wait_vm('w1')
            e('s_barrier')
        e('s_waitcnt lgkmcnt(0)')
        rd_ = reads(st ^ 1) if r < 7 else []
        n = 0
        for i in range(8):
            for t in range(i, 8):
                e(f'v_mfma_f32_16x16x32_bf16 v[{ACC+4*t}:{ACC+4*t+3}], v[{SA[st]+4*i}:{SA[st]+4*i+3}], v[{SB[st]+4*(t-i)}:{SB[st]+4*(t-i)+3}], v[{ACC+4*t}:{ACC+4*t+3}]')
                n += 1
                if rd_ and n >= 2: e(rd_.pop(0))
                if n in DMA_AT and dma:
                    tag, g = dma.pop(0)
                    for x in g: e(x, vm=tag)
                if n in (8, 20, 30) and pend_store:
                    for x in job_store('w1', pend_store.pop(0)): e(x, vm='o')
        if r >= W1_AT and w1_next[0] < 9:
            for slot in range(3):
                for x in job_read('w1', w1_next[0], slot): e(x)
                w1_next[0] += 1
                pend_store.append(slot)
        if r < 7:
            for x in step(): e(x)
    assert not dma and w1_next[0] == 9
    if pend_store:
        e('s_waitcnt lgkmcnt(0)')
        for slot in list(pend_store):
            for x in job_store('w1', slot): e(x, vm='o')
        pend_store = []
    e.lg = []
    e('s_waitcnt lgkmcnt(0)')
    e.wait_vm('xr')
    e('s_barrier')
    e('v_and_b32 v14, 15, v2', 'v_lshlrev_b32 v14, 7, v14', 'v_lshrrev_b32 v15, 4, v2', 'v_lshlrev_b32 v15, 3, v15', 'v_add_u32 v14, v14, v15',
      's_lshl_b32 s16, s20, 5', f's_add_u32 s16, s16, {XRS}', 'v_add_u32 v14, s16, v14')
    def ep_reads(t):
        e(f'ds_read_b64 v[{48+4*t}:{49+4*t}], v{VE} offset:{HZ+512+512*t}', lg=('h', t))
        e(f'ds_read_b64 v[{50+4*t}:{51+4*t}], v14 offset:{2048*t}', lg=('h', t))
    for t in range(4): ep_reads(t)
    for t in range(8):
        e.wait_lg(('h', t))
        r = 48 + 4*t
        e(lo(10, r), hi(11, r), lo(12, r+1), hi(13, r+1))
        for k in range(4):
            e(f'v_fma_f32 v{10+k}, v{10+k}, s23, v{ACC+4*t+k}')
        e(lo(4, r+2), hi(5, r+2), lo(6, r+3), hi(7, r+3))
        for k in range(4):
            e(f'v_fma_f32 v{10+k}, v{10+k}, s26, v{4+k}')
        e(f'v_cvt_pk_bf16_f32 v{r}, v10, v11', f'v_cvt_pk_bf16_f32 v{r+1}, v12, v13')
        e(f'ds_write_b64 v{VE}, v[{r}:{r+1}] offset:{KE+512*t}', lg='aw')
        if t + 4 < 8: ep_reads(t + 4)
    e('s_waitcnt lgkmcnt(0)', 's_barrier')
    e('v_bfe_u32 v10, v2, 2, 2', f'v_mul_u32_u24 v10, {WSTR}, v10', 'v_lshrrev_b32 v11, 4, v2', 'v_lshlrev_b32 v11, 5, v11', 'v_add_u32 v10, v10, v11',
      'v_and_b32 v11, 3, v2', 'v_lshlrev_b32 v11, 3, v11', 'v_add_u32 v10, v10, v11', 's_lshl_b32 s16, s20, 10', 'v_add_u32 v10, s16, v10')
    e('v_lshlrev_b32 v11, 3, v2', 's_lshl_b32 s16, s2, 14', 's_lshl_b32 s17, s20, 12', 's_add_u32 s16, s16, s17', f's_add_u32 s16, s16, {Lo.AT4:#x}')
    e.lg = []
    for q in range(8):
        e(f'ds_read_b64_tr_b16 v[{16+2*q}:{17+2*q}], v10 offset:{KE+128*q}', lg=('t', q))
    for q in range(8):
        e.wait_lg(('t', q))
        e(f'buffer_store_dwordx2 v[{16+2*q}:{17+2*q}], v11, s[8:11], s16 offen offset:{512*q}{sm}', vm='o')
    e.wait_vm('w2')
    e('s_barrier')
    e.lg = []
    for q in range(5):
        for x in job_read('w2', q, q): e(x, lg=('t', q))
    for q in range(9):
        e.wait_lg(('t', q))
        for x in job_store('w2', q % 5): e(x, vm='o')
        if q + 5 < 9:
            for x in job_read('w2', q + 5, q % 5): e(x, lg=('t', q + 5))
    e.label('K2_END')
    e('s_endpgm')
    return e

if __name__ == '__main__':
    import asmlib
    e = build()
    errs = asmlib.check(e.lines)
    print('instructions', len(e.lines), 'nops', e.nops, 'hazard errors', len(errs))
    for x in errs[:20]: print(x)
```

```python
from emit import Em, cost
import layout as Lo
from common import f2h

NAME = 'k4_mlp_kernel'
LDS_Y, LDS_H, LDS_B = 0, 73728, 147456
LDS_Z = LDS_B + 18 * 128
LDS_BYTES = LDS_Z + 128
C0 = -2.302208198
C1 = C0 * 0.044715

V_L16, V_RD, V_BASE, V_HW, V_HWH, V_BR, V_BRH, V_C0, V_XW, V_XR = 1, 2, 4, 6, 8, 9, 10, 11, 12, 13
V_BIAS, V_HP, V_T, V_TMP, V_YX, V_ACC, V_RING, V_SH = 16, 32, 40, 44, 48, 80, 144, 240
S_WS, S_B1 = 8, 12
S_W, S_A, S_SEG1, S_SEG2, S_SEG2H, S_P0, S_P1, S_PH = 20, 21, 22, 23, 24, 25, 26, 27
S_PAR, S_D1, S_DA, S_DB, S_DC, S_DS = 18, 28, 29, 30, 31, 32
S_Y, S_YL = 40, 41
S_C1, S_ONE = 72, 74
S_O18A, S_O18B, S_O14A, S_O14B, S_O28A, S_O28B, S_HW3 = 42, 43, 44, 45, 46, 47, 48

def tile_pos(ftl):
    if ftl >= 16: return 12 + (ftl - 16)
    w, i = ftl >> 2, ftl & 3
    return 3 * w + i if i < 3 else 14 + w

def yreg(i):
    return f'a[{4*i}:{4*i+3}]' if i < 64 else f'v[{V_YX+4*(i-64)}:{V_YX+4*(i-64)+3}]'
def acc(buf, slot): return V_ACC + 32 * buf + 16 * slot
def rng(b, n): return f'v[{b}:{b+n-1}]'

def build(NA=24, store_mod=' sc1', G=2, stamps=False, R=4, prefetch=False, pstamps=False, fuse=True, spin=1 << 22):
    e = Em()
    e.label(NAME)
    nst = [0]
    def stamp(p=False):
        if stamps and (p == pstamps or nst[0] == 0) and nst[0] < 8:
            e(f's_memtime s[{56+2*nst[0]}:{57+2*nst[0]}]'); nst[0] += 1
    stamp()
    e('s_cmp_ge_u32 s2, 256', 's_cbranch_scc1 K4_END')
    e(f's_load_dwordx2 s[4:5], s[0:1], {Lo.KA["ws"]}', f's_load_dwordx2 s[6:7], s[0:1], {Lo.KA["b1"]}')
    e('v_lshrrev_b32 v14, 6, v0', 'v_and_b32 v15, 63, v0')
    e(f'v_readfirstlane_b32 s{S_W}, v14')
    e(f'v_lshlrev_b32 v{V_L16}, 4, v15')
    if R == 1:
        e('s_and_b32 s16, s2, 7', 's_lshr_b32 s17, s2, 3', 's_lshr_b32 s49, s2, 3')
    elif R == 4:
        e('s_and_b32 s16, s2, 1', 's_lshl_b32 s16, s16, 2', 's_bfe_u32 s17, s2, 0x20003', 's_add_u32 s16, s16, s17')
        e('s_bfe_u32 s17, s2, 0x20001', 's_lshl_b32 s17, s17, 3', 's_lshr_b32 s49, s2, 5', 's_add_u32 s17, s17, s49')
    elif R == 8:
        e('s_bfe_u32 s16, s2, 0x30003', 's_and_b32 s17, s2, 7', 's_lshl_b32 s17, s17, 2', 's_lshr_b32 s49, s2, 6', 's_add_u32 s17, s17, s49')
    else:
        e('s_and_b32 s16, s2, 3', 's_lshl_b32 s16, s16, 1', 's_bfe_u32 s17, s2, 0x10003', 's_add_u32 s16, s16, s17')
        e('s_bfe_u32 s17, s2, 0x10002', 's_lshl_b32 s17, s17, 4', 's_lshr_b32 s49, s2, 4', 's_add_u32 s17, s17, s49')
    e(f's_and_b32 s{S_PAR}, s{S_W}, 1', f's_lshr_b32 s19, s{S_W}, 1')
    P = f's{S_PAR}'
    e(f's_mul_i32 s{S_D1}, {P}, -36864', f's_mul_i32 s{S_DA}, {P}, -28672', f's_mul_i32 s{S_DB}, {P}, 18432', f's_mul_i32 s{S_DC}, {P}, -8192')
    e(f's_mul_i32 s{S_DS}, {P}, -10240', f's_add_u32 s{S_DS}, s{S_DS}, 14336')
    e(f's_mul_i32 s{S_O18A}, {P}, 18432', f's_sub_u32 s{S_O18B}, 18432, s{S_O18A}')
    e(f's_mul_i32 s{S_O14A}, {P}, 14336', f's_sub_u32 s{S_O14B}, 14336, s{S_O14A}')
    e(f's_lshl_b32 s{S_O28A}, {P}, 12', f's_sub_u32 s{S_O28B}, {28672+4096}, s{S_O28A}', f's_add_u32 s{S_O28A}, s{S_O28A}, 28672')
    e('s_mul_i32 s33, s16, 18')
    e(f's_lshl_b32 s34, s{S_W}, 2', 's_add_u32 s34, s34, s33', 's_mul_i32 s34, s34, 36864')
    e('s_add_u32 s35, s33, s19', 's_add_u32 s35, s35, 16', 's_mul_i32 s35, s35, 36864')
    e(f's_add_u32 s{S_A}, s35, s{S_O18A}', f's_add_u32 s{S_A}, s{S_A}, {Lo.W1F:#x}')
    e(f's_add_u32 s{S_SEG1}, s34, s{S_O18A}', f's_add_u32 s{S_SEG1}, s{S_SEG1}, {Lo.W1F:#x}')
    e(f's_add_u32 s{S_SEG2}, s34, s{S_O14A}', f's_add_u32 s{S_SEG2}, s{S_SEG2}, {Lo.W2F:#x}')
    e(f's_add_u32 s{S_SEG2H}, s35, s{S_O14A}', f's_add_u32 s{S_SEG2H}, s{S_SEG2H}, {Lo.W2F:#x}')
    e('s_lshl_b32 s34, s17, 3', 's_add_u32 s34, s34, s16', 's_mul_i32 s34, s34, 73728', f's_add_u32 s34, s34, {Lo.PART:#x}')
    e(f's_lshl_b32 s35, s{S_W}, 14', 's_add_u32 s35, s35, s34')
    e(f's_lshl_b32 s36, {P}, 11', f's_add_u32 s{S_P0}, s35, s36', 's_xor_b32 s36, s36, 2048', f's_add_u32 s{S_P1}, s35, s36')
    e('s_add_u32 s35, s19, 16', 's_lshl_b32 s35, s35, 12', 's_add_u32 s35, s35, s34', f's_lshl_b32 s36, {P}, 11', f's_add_u32 s{S_PH}, s35, s36')
    e(f's_mul_i32 s35, {P}, 36864', 's_mul_i32 s36, s19, 18432', 's_add_u32 s36, s36, s35')
    e('s_mul_i32 s37, s17, 73728', 's_add_u32 s37, s37, s36', f's_add_u32 s{S_Y}, s37, {Lo.YF:#x}', f's_add_u32 s{S_YL}, s36, {LDS_Y}')
    e(f's_xor_b32 s36, {P}, 1', 's_mul_i32 s36, s36, 36864')
    e(f'v_add_u32 v{V_BASE}, s35, v{V_L16}', f'v_add_u32 v{V_BASE+1}, s36, v{V_L16}')
    e(f'v_add_u32 v{V_RD}, s{S_O18A}, v{V_BASE}', f'v_add_u32 v{V_RD+1}, s{S_O18A}, v{V_BASE+1}')
    e(f's_mul_i32 s37, s{S_W}, 6144', f's_add_u32 s37, s37, {LDS_H}')
    e(f'v_add_u32 v{V_HW}, s37, v{V_BASE}', f'v_add_u32 v{V_HW+1}, s37, v{V_BASE+1}')
    e(f's_lshl_b32 s{S_HW3}, s{S_W}, 12', f's_sub_u32 s{S_HW3}, 28672, s{S_HW3}')
    e('s_lshl_b32 s37, s19, 11', f's_add_u32 s37, s37, {LDS_H + 24576}', f'v_add_u32 v{V_HWH}, s37, v{V_BASE}')
    e(f's_lshl_b32 s37, s{S_W}, 11', f's_add_u32 s37, s37, {LDS_H + 28672}', f'v_add_u32 v{V_XW}, s37, v{V_L16}')
    e(f's_xor_b32 s37, s{S_W}, 1', 's_lshl_b32 s37, s37, 11', f's_add_u32 s37, s37, {LDS_H + 28672}', f'v_add_u32 v{V_XR}, s37, v{V_L16}')
    e('v_lshrrev_b32 v14, 5, v15', 'v_lshlrev_b32 v14, 6, v14')
    e(f's_lshl_b32 s37, s{S_W}, 9', f's_add_u32 s37, s37, {LDS_B}', f'v_add_u32 v{V_BR}, s37, v14')
    e('s_lshl_b32 s37, s19, 7', f's_add_u32 s37, s37, {LDS_B + 2048}', f's_cmp_eq_u32 {P}, 0', f's_cselect_b32 s37, s37, {LDS_Z}', f'v_add_u32 v{V_BRH}, s37, v14')
    e(f'v_mov_b32 v{V_C0}, {f2h(C0)}')
    e('s_waitcnt lgkmcnt(0)')
    stamp(True)
    e.srd(S_WS, 4, 5, Lo.WS_END)
    e.srd(S_B1, 6, 7, Lo.F * 2)
    e('s_mul_i32 s37, s16, 1152', 'v_lshlrev_b32 v14, 3, v0', 'v_add_u32 v14, s37, v14')
    e(f'buffer_load_dwordx2 v[14:15], v14, s[{S_B1}:{S_B1+3}], 0 offen', vm='bias')

    NF = 324
    st = dict(next=0, off=0)
    free = [V_RING + 4 * k for k in range(NA)]
    slot_of = {}
    def seg(setto=None, delta=None, const=0):
        if setto is not None:
            e(f's_mov_b32 s{S_A}, s{setto}')
        else:
            if st['off'] + const: e(f's_add_u32 s{S_A}, s{S_A}, {st["off"] + const}')
            e(f's_add_u32 s{S_A}, s{S_A}, s{delta}')
        st['off'] = 0
    def load_frag():
        n = st['next']
        if n >= NF: return
        if 18 <= n < 162:
            k = (n - 18) % 36
            if k == 0: seg(setto=S_SEG1); e(f's_add_u32 s{S_SEG1}, s{S_SEG1}, 36864')
            if k == 18: seg(delta=S_D1)
        elif n >= 162:
            m = n - 162
            if 36 <= m < 54:
                k = m - 36
                if k == 0: seg(setto=S_SEG2H)
                if k == 14: seg(delta=S_DS)
            else:
                k = m if m < 36 else (m - 54) % 36
                if k == 0: seg(setto=S_SEG2); e(f's_add_u32 s{S_SEG2}, s{S_SEG2}, 36864')
                if k == 14: seg(delta=S_DA)
                if k == 28: seg(delta=S_DB)
                if k == 32: seg(delta=S_DC)
        r = free.pop(0); slot_of[n] = r
        e(f'buffer_load_dwordx4 {rng(r,4)}, v{V_L16}, s[{S_WS}:{S_WS+3}], s{S_A} offen offset:{st["off"]}', vm=('f', n))
        st['off'] += 1024
        if st['off'] == 4096:
            e(f's_add_u32 s{S_A}, s{S_A}, 4096'); st['off'] = 0
        st['next'] = n + 1
    def y_chunk(c):
        for j in range(6):
            if j % 4 == 0: e(f's_mov_b32 m0, s{S_YL}')
            e(f'buffer_load_dwordx4 v{V_L16}, s[{S_WS}:{S_WS+3}], s{S_Y} offen offset:{(j%4)*1024} lds', vm=('y', c))
            if j == 3: e(f's_add_u32 s{S_Y}, s{S_Y}, 4096', f's_add_u32 s{S_YL}, s{S_YL}, 4096')
        e(f's_add_u32 s{S_Y}, s{S_Y}, 2048', f's_add_u32 s{S_YL}, s{S_YL}, 2048')
    if not ln2:
        y_chunk(0)
        for _ in range(6): load_frag()
        y_chunk(1)
        for _ in range(6): load_frag()
        y_chunk(2)
        for _ in range(NA - 12): load_frag()
    else:
        VV = lambda i: (96 + 8 * i)
        e(f'v_lshrrev_b32 v18, 4, v{V_L16}', 'v_and_b32 v16, 15, v18', 'v_lshrrev_b32 v17, 4, v18')
        e('s_lshl_b32 s33, s17, 6', f's_lshl_b32 s34, s{S_W}, 4', 's_add_u32 s33, s33, s34', 'v_add_u32 v18, s33, v16', 'v_lshlrev_b32 v18, 3, v18',
          'v_lshlrev_b32 v19, 15, v17', 'v_add_u32 v18, v18, v19', 'v_add_u32 v19, 16384, v18')
        e('v_lshlrev_b32 v20, 4, v0', f's_mov_b32 s33, {Lo.MODB + 4*576*2:#x}', f's_mov_b32 s34, {Lo.MODB + 3*576*2:#x}')
        e(f'buffer_load_dwordx4 v[24:27], v20, s[{S_WS}:{S_WS+3}], s33 offen', vm='tab')
        e(f'buffer_load_dwordx4 v[28:31], v20, s[{S_WS}:{S_WS+3}], s34 offen', vm='tab')
        e(f's_mov_b32 s{S_Y}, {Lo.AT4:#x}')
        def x_load(i):
            e(f'buffer_load_dwordx2 v[{VV(i)+4}:{VV(i)+5}], v18, s[{S_WS}:{S_WS+3}], s{S_Y} offen', vm=('x', i))
            e(f'buffer_load_dwordx2 v[{VV(i)+6}:{VV(i)+7}], v19, s[{S_WS}:{S_WS+3}], s{S_Y} offen', vm=('x', i))
            if i < 17: e(f's_add_u32 s{S_Y}, s{S_Y}, 131072')
        for i in range(XPRE): x_load(i)
        stamp(True)
    if prefetch:
        nshare = 32 if R == 1 else 16
        e('s_lshl_b32 s37, s49, 8', 'v_add_u32 v44, s37, v0', 'v_lshlrev_b32 v44, 7, v44', 's_mul_i32 s37, s16, 663552')
        step = nshare * 256 * 128
        for base in ((Lo.W2F,) if prefetch == 'w2' else (Lo.W1F, Lo.W2F)):
            e(f's_add_u32 s38, s37, {base:#x}')
            nrep = (663552 + step - 1) // step
            for k in range(nrep):
                if (k + 1) * step > 663552:
                    e(f'v_cmp_gt_u32 vcc, {663552 - k*step}, v44', 's_and_saveexec_b64 s[52:53], vcc')
                e(f'buffer_load_dword v45, v44, s[{S_WS}:{S_WS+3}], s38 offen', vm='pf')
                if (k + 1) * step > 663552: e('s_mov_b64 exec, s[52:53]')
                else: e(f's_add_u32 s38, s38, {step}')
    stamp(True)
    e('v_lshrrev_b32 v46, 3, v0', 'v_lshlrev_b32 v46, 7, v46', 'v_and_b32 v47, 1, v0', 'v_lshlrev_b32 v47, 6, v47', 'v_add_u32 v46, v46, v47',
      'v_bfe_u32 v47, v0, 1, 2', 'v_lshlrev_b32 v47, 4, v47', 'v_add_u32 v46, v46, v47', f'v_add_u32 v46, {LDS_B}, v46')
    e.wait_vm('bias')
    stamp(True)
    e('v_lshlrev_b32 v40, 16, v14', 'v_and_b32 v41, 0xffff0000, v14', 'v_lshlrev_b32 v42, 16, v15', 'v_and_b32 v43, 0xffff0000, v15')
    e('v_cmp_gt_u32 vcc, 144, v0')
    for k in range(4): e(f'v_cndmask_b32 v{40+k}, 0, v{40+k}, vcc')
    e('v_cmp_gt_u32 vcc, 152, v0', 's_and_saveexec_b64 s[38:39], vcc')
    e('ds_write_b128 v46, v[40:43]', lg='bw')
    e('s_mov_b64 exec, s[38:39]')

    if ln2:
        TG, TS = 0, 2304
        e.wait_vm('tab')
        for k in range(4):
            e(f'v_lshlrev_b32 v{32+2*k}, 16, v{24+k}', f'v_and_b32 v{33+2*k}, 0xffff0000, v{24+k}')
            e(f'v_lshlrev_b32 v{48+2*k}, 16, v{28+k}', f'v_and_b32 v{49+2*k}, 0xffff0000, v{28+k}')
        for k in range(0, 8, 2):
            e(f'v_add_f32 v{32+k}, 1.0, v{32+k}', f'v_add_f32 v{33+k}, 1.0, v{33+k}', f'v_cvt_pk_bf16_f32 v24, v{32+k}, v{33+k}',
              f'v_lshlrev_b32 v{32+k}, 16, v24', f'v_and_b32 v{33+k}, 0xffff0000, v24')
        e('v_lshlrev_b32 v20, 5, v0', f'v_add_u32 v20, {LDS_H}, v20', 'v_cmp_gt_u32 vcc, 72, v0', 's_and_saveexec_b64 s[38:39], vcc')
        e(f'ds_write_b128 v20, v[32:35] offset:{TG}', f'ds_write_b128 v20, v[36:39] offset:{TG+16}', f'ds_write_b128 v20, v[48:51] offset:{TS}', f'ds_write_b128 v20, v[52:55] offset:{TS+16}')
        e('s_mov_b64 exec, s[38:39]')
        pr = lambda b: f'v[{b}:{b+1}]'
        def rowsum(dst):
            e(f'v_add_f32 v{dst}, v{dst}, v{dst+1}', f'v_mov_b32 v{dst+1}, v{dst}', f'v_permlane16_swap_b32 v{dst}, v{dst+1}', f'v_add_f32 v{dst}, v{dst}, v{dst+1}',
              f'v_mov_b32 v{dst+1}, v{dst}', f'v_permlane32_swap_b32 v{dst}, v{dst+1}', f'v_add_f32 v{dst}, v{dst}, v{dst+1}',
              f'v_mul_f32 v{dst}, {f2h(1/576)}, v{dst}')
        M, Q, M2, Q2, NM = 20, 22, 24, 28, 30
        def stats():
            e(f'v_pk_add_f32 {pr(M)}, {pr(M)}, {pr(M2)}', f'v_pk_add_f32 {pr(Q)}, {pr(Q)}, {pr(Q2)}')
            rowsum(M); rowsum(Q)
            e(f'v_fma_f32 v{Q}, -v{M}, v{M}, v{Q}', f'v_max_f32 v{Q}, 0, v{Q}', f'v_add_f32 v{Q}, {f2h(1e-5)}, v{Q}', f'v_rsq_f32 v{Q}, v{Q}',
              f'v_mov_b32 v{M+1}, v{M}', f'v_mov_b32 v{Q+1}, v{Q}')
        def accumulate(v, first):
            if first:
                e(f'v_pk_add_f32 {pr(M)}, {pr(v)}, {pr(v+2)}', f'v_pk_add_f32 {pr(M2)}, {pr(v+4)}, {pr(v+6)}',
                  f'v_pk_mul_f32 {pr(Q)}, {pr(v)}, {pr(v)}', f'v_pk_mul_f32 {pr(Q2)}, {pr(v+2)}, {pr(v+2)}')
            else:
                e(f'v_pk_add_f32 {pr(M)}, {pr(M)}, {pr(v)}', f'v_pk_add_f32 {pr(M2)}, {pr(M2)}, {pr(v+4)}',
                  f'v_pk_fma_f32 {pr(Q)}, {pr(v)}, {pr(v)}, {pr(Q)}', f'v_pk_fma_f32 {pr(Q2)}, {pr(v+2)}, {pr(v+2)}, {pr(Q2)}',
                  f'v_pk_add_f32 {pr(M)}, {pr(M)}, {pr(v+2)}', f'v_pk_add_f32 {pr(M2)}, {pr(M2)}, {pr(v+6)}')
            e(f'v_pk_fma_f32 {pr(Q)}, {pr(v+4)}, {pr(v+4)}, {pr(Q)}', f'v_pk_fma_f32 {pr(Q2)}, {pr(v+6)}, {pr(v+6)}, {pr(Q2)}')
        for i in range(18):
            e.wait_vm(('x', i))
            if i == 0: stamp(True); stamp('ln')
            if i + XPRE < 18: x_load(i + XPRE)
            v = VV(i)
            e(f'v_lshlrev_b32 v{v}, 16, v{v+4}', f'v_and_b32 v{v+1}, 0xffff0000, v{v+4}', f'v_lshlrev_b32 v{v+2}, 16, v{v+5}', f'v_and_b32 v{v+3}, 0xffff0000, v{v+5}',
              f'v_lshlrev_b32 v{v+4}, 16, v{v+6}', f'v_and_b32 v{v+5}, 0xffff0000, v{v+6}', f'v_lshlrev_b32 v{v+6}, 16, v{v+7}', f'v_and_b32 v{v+7}, 0xffff0000, v{v+7}')
            accumulate(v, i == 0)
        stamp(True); stamp('ln')
        e.wait_all(vm=False, lg=True)
        e('s_barrier')
        e('v_lshlrev_b32 v26, 5, v17', f'v_add_u32 v26, {LDS_H}, v26')
        TB = [32, 48, 64]
        def tab_reads(i):
            t = TB[i % 3]
            for (o, base) in ((0, TG), (8, TS)):
                e(f'ds_read_b128 v[{t+o}:{t+o+3}], v26 offset:{base + 128*i}', f'ds_read_b128 v[{t+o+4}:{t+o+7}], v26 offset:{base + 128*i + 16}', lg=('t', i))
        tab_reads(0); tab_reads(1)
        stats()
        e(f'v_mov_b32 v{NM}, v{M}', f'v_mov_b32 v{NM+1}, v{M}', f'v_mov_b32 v82, v{Q}', f'v_mov_b32 v83, v{Q}')
        stamp(True); stamp('ln')
        for i in range(18):
            if i + 2 < 18: tab_reads(i + 2)
            e.wait_lg(('t', i))
            v, t = VV(i), TB[i % 3]
            for k in range(0, 8, 2): e(f'v_pk_mul_f32 {pr(t+k)}, {pr(t+k)}, {pr(82)}')
            for k in range(0, 8, 2): e(f'v_pk_fma_f32 {pr(t+8+k)}, {pr(t+k)}, {pr(NM)}, {pr(t+8+k)} neg_lo:[1,0,0] neg_hi:[1,0,0]')
            for k in range(0, 8, 2): e(f'v_pk_fma_f32 {pr(v+k)}, {pr(v+k)}, {pr(t+k)}, {pr(t+8+k)}')
            accumulate(v, i == 0)
        stamp('ln')
        stats()
        e(f'v_mul_f32 v{M}, v{M}, v{Q}', f'v_mov_b32 v{M+1}, v{M}')
        stamp(True); stamp('ln')
        e('v_lshrrev_b32 v26, 1, v17', 'v_lshlrev_b32 v26, 10, v26', 'v_and_b32 v27, 1, v17', 'v_lshlrev_b32 v27, 9, v27', 'v_add_u32 v26, v26, v27',
          'v_lshlrev_b32 v27, 4, v16', 'v_add_u32 v26, v26, v27', f's_lshr_b32 s33, s{S_W}, 1', 's_mul_i32 s33, s33, 36864', f's_and_b32 s34, s{S_W}, 1', 's_lshl_b32 s34, s34, 8',
          's_add_u32 s33, s33, s34', f's_add_u32 s33, s33, {LDS_Y}', 'v_add_u32 v26, s33, v26')
        for i in list(range(6, 18)) + list(range(6)):
            v = VV(i)
            for k in range(0, 8, 2): e(f'v_pk_fma_f32 {pr(v+k)}, {pr(v+k)}, {pr(Q)}, {pr(M)} neg_lo:[0,0,1] neg_hi:[0,0,1]')
            for k in range(4): e(f'v_cvt_pk_bf16_f32 v{32+4*(i&1)+k}, v{v+2*k}, v{v+2*k+1}')
            e(f'ds_write_b128 v26, v[{32+4*(i&1)}:{35+4*(i&1)}] offset:{2048*i}', lg='yw')
            if i >= 6:
                load_frag(); load_frag()
            if i % 6 == 5: e('s_waitcnt lgkmcnt(2)')
        e.lg = ['yw']
        stamp('ln')

    def bias_reads(addr, off):
        return [f'ds_read_b128 {rng(V_BIAS+4*c,4)}, v{addr} offset:{off+16*c}' for c in range(4)]
    def gelu_group(xs, hp):
        ts = [V_T + j for j in range(4)]
        out = []
        if pkgelu:
            P = lambda b: f'v[{b}:{b+1}]'
            for j in (0, 2): out.append(f'v_pk_mul_f32 {P(ts[j])}, {P(xs[j])}, {P(xs[j])}')
            for j in (0, 2): out.append(f'v_pk_fma_f32 {P(ts[j])}, {P(ts[j])}, s[{S_C1}:{S_C1+1}], v[14:15]')
            for j in (0, 2): out.append(f'v_pk_mul_f32 {P(ts[j])}, {P(xs[j])}, {P(ts[j])}')
            for j in range(4): out.append(f'v_exp_f32 v{ts[j]}, v{ts[j]}')
            for j in (0, 2): out.append(f'v_pk_add_f32 {P(ts[j])}, {P(ts[j])}, s[{S_ONE}:{S_ONE+1}]')
            for j in range(4): out.append(f'v_rcp_f32 v{ts[j]}, v{ts[j]}')
            for j in (0, 2): out.append(f'v_pk_mul_f32 {P(ts[j])}, {P(xs[j])}, {P(ts[j])}')
        else:
            for j in range(4): out.append(f'v_mul_f32 v{ts[j]}, v{xs[j]}, v{xs[j]}')
            for j in range(4): out.append(f'v_fmamk_f32 v{ts[j]}, v{ts[j]}, {f2h(C1)}, v{V_C0}')
            for j in range(4): out.append(f'v_mul_f32 v{ts[j]}, v{xs[j]}, v{ts[j]}')
            for j in range(4): out.append(f'v_exp_f32 v{ts[j]}, v{ts[j]}')
            for j in range(4): out.append(f'v_add_f32 v{ts[j]}, 1.0, v{ts[j]}')
            for j in range(4): out.append(f'v_rcp_f32 v{ts[j]}, v{ts[j]}')
            for j in range(4): out.append(f'v_mul_f32 v{ts[j]}, v{xs[j]}, v{ts[j]}')
        out.append(f'v_cvt_pk_bf16_f32 v{hp}, v{ts[0]}, v{ts[1]}')
        out.append(f'v_cvt_pk_bf16_f32 v{hp+1}, v{ts[2]}, v{ts[3]}')
        return out
    def gelu_half(x0, step, addr, off):
        out = []
        for g in range(2):
            out += gelu_group([x0 + 8*step + 4*g + j for j in range(4)], V_HP + 4 * step + 2 * g)
        out.append(f'ds_write_b128 v{addr}, {rng(V_HP + 4*step, 4)} offset:{off}')
        return out
    def gelu_tile(buf, i):
        out = []
        for sl in range(2):
            for step in range(2):
                out += gelu_half(acc(buf, sl), step, V_HW + sl, ((2*i if i < 3 else 0) + step) * 1024)
        return out
    def store_stream(x0s):
        out = []
        for x0, sreg in x0s:
            for q in range(2):
                hp = V_HP + 4 * q
                for j in range(4):
                    out.append(f'v_cvt_pk_bf16_f32 v{hp+j}, v{x0+8*q+2*j}, v{x0+8*q+2*j+1}')
                if not nostore: out.append(f'buffer_store_dwordx4 {rng(hp,4)}, v{V_L16}, s[{S_WS}:{S_WS+3}], s{sreg} offen offset:{q*1024}{store_mod}')
        return out
    def xchg_send(x0, addr, offs):
        return [f'ds_write_b128 v{addr}, {rng(x0+4*k,4)} offset:{offs[k]}' for k in range(4)]
    def xchg_recv(dst, addr, offs):
        out = []
        for k in range(4):
            out.append(('xr', f'ds_read_b128 {rng(V_TMP,4)}, v{addr} offset:{offs[k]}'))
            out.append(('gap', 4))
            out.append(('xw', None))
            for j in range(4): out.append(f'v_add_f32 v{dst+4*k+j}, v{dst+4*k+j}, v{V_TMP+j}')
        return out

    fr = dict(n=0)
    def emit_fill(x):
        if isinstance(x, tuple):
            if x[0] == 'xr': e(x[1], lg='xr')
            elif x[0] == 'xw': e.wait_lg('xr')
            return 4
        e(x, vm='st', lg='hw')
        return cost(x)
    def unit(accs, slots, fill, first_c, jit=None, pre=None, pre_at=None, delay=3, barriers=None, fill_until=None):
        ns = len(accs); nm = len(slots) * ns
        fill = list(fill)
        total = sum(4 if isinstance(x, tuple) else cost(x) for x in fill)
        span = (fill_until if fill_until else nm) - delay
        done, gap, hold = 0, 0, 0
        DJ = 4
        barriers = dict(barriers or {})
        pend = [i for i in range(len(slots)) if jit and slots[i] in jit]
        limit = [min([b for b in barriers] + [len(slots)]) if barriers else len(slots)]
        def issue_jit(upto):
            while pend and pend[0] <= upto and pend[0] < limit[0]:
                i = pend.pop(0)
                setup, off = jit[slots[i]]
                if setup is not None:
                    for sl in range(ns): e(f'v_add_u32 v{V_RD+sl}, s{setup}, v{V_BASE+sl}')
                for sl in range(ns):
                    e(f'ds_read_b128 {yreg(sl*36+slots[i])}, v{V_RD+sl} offset:{off}', lg=('y', i))
        def do_barrier(i):
            barriers.pop(i)()
            limit[0] = min([b for b in barriers] + [len(slots)]) if barriers else len(slots)
            issue_jit(i + DJ - 1)
        if 0 in barriers: do_barrier(0)
        else: issue_jit(DJ - 1)
        n0 = fr['n']
        for i, slot in enumerate(slots):
            if i in barriers:
                while fill and fill_until and i * ns >= fill_until: emit_fill(fill.pop(0))
                do_barrier(i)
            n = fr['n']
            if i % G == 0: e.wait_vm(('f', min(n + G - 1, n0 + len(slots) - 1)))
            e.wait_lg(('y', i))
            r = slot_of[n]
            for sl in range(ns):
                a = accs[sl]
                c = (first_c if (i == 0 and first_c is not None) else rng(a, 16))
                e(f'v_mfma_f32_32x32x16_bf16 {rng(a,16)}, {rng(r,4)}, {yreg(sl*36+slot)}, {c}')
                gap += 1
                if sl == ns - 1:
                    free.append(r)
                    load_frag()
                    issue_jit(i + DJ)
                    if pre and i == pre_at:
                        for x in pre: e(x, lg='bias')
                if gap >= delay:
                    target = total * min(1.0, (gap - delay + 1) / span)
                    while fill and done < target and gap >= hold:
                        x = fill.pop(0)
                        if isinstance(x, tuple) and x[0] == 'gap':
                            hold = gap + x[1]; continue
                        done += emit_fill(x)
            fr['n'] = n + 1
        for x in fill:
            if not (isinstance(x, tuple) and x[0] == 'gap'): emit_fill(x)

    bias = rng(V_BIAS, 16)
    if pkgelu:
        e(f's_mov_b32 s{S_C1}, {f2h(C1)}', f's_mov_b32 s{S_C1+1}, {f2h(C1)}', f's_mov_b32 s{S_ONE}, 1.0', f's_mov_b32 s{S_ONE+1}, 1.0', f'v_mov_b32 v14, {f2h(C0)}', f'v_mov_b32 v15, {f2h(C0)}')
    def ybar(c):
        def f():
            e.wait_vm(('y', c))
            stamp(True)
            if c == 0: e.wait_all(vm=False, lg=True)
            e('s_barrier')
            if c == 0:
                stamp(); stamp('ln')
                for x in bias_reads(V_BRH, 0): e(x, lg='bias')
        return f
    def ldsbar():
        e.wait_all(vm=False, lg=True)
        e('s_barrier')
    XO1 = [0, 1024, 36864, 36864 + 1024]
    XO2 = [0, 1024, 2048, 3072]
    unit([V_SH, acc(1, 1)], list(range(18)), [], bias, jit={i: (None, i * 1024) for i in range(18)},
         barriers=({0: ybar(0)} if ln2 else {0: ybar(0), 6: ybar(1), 12: ybar(2)}), pre=bias_reads(V_BR, 0), pre_at=12)
    stamp()
    e.wait_lg('bias')
    unit([acc(0, 0), acc(0, 1)], list(range(36)), xchg_send(acc(1, 1), V_XW, XO1), bias,
         jit={i: (S_O18B if i == 18 else None, (i - 18) * 1024) for i in range(18, 36)}, delay=8, fill_until=24,
         pre=bias_reads(V_BR, 128), pre_at=30)
    ldsbar()
    stamp()
    unit([acc(1, 0), acc(1, 1)], list(range(36)), gelu_tile(0, 0) + xchg_recv(V_SH, V_XR, XO1), bias, pre=bias_reads(V_BR, 256), pre_at=30)
    e.wait_lg('bias')
    unit([acc(0, 0), acc(0, 1)], list(range(36)), gelu_half(V_SH, 0, V_HWH, 0) + gelu_tile(1, 1), bias, pre=bias_reads(V_BR, 384), pre_at=30)
    e.wait_lg('bias')
    unit([acc(1, 0), acc(1, 1)], list(range(36)), gelu_half(V_SH, 1, V_HWH, 1024) + gelu_tile(0, 2), bias)
    for k in range(extra_ring):
        free.append(V_BIAS + 4 * k)
        load_frag()
    e(f'v_add_u32 v{V_HW}, s{S_HW3}, v{V_HW}', f'v_add_u32 v{V_HW+1}, s{S_HW3}, v{V_HW+1}')
    e(f'v_add_u32 v{V_BASE}, {LDS_H}, v{V_BASE}', f'v_add_u32 v{V_BASE+1}, {LDS_H}, v{V_BASE+1}')
    e(f's_lshl_b32 s37, s{S_W}, 12', f'v_add_u32 v{V_XW}, s37, v{V_L16}', f's_xor_b32 s37, s37, 4096', f'v_add_u32 v{V_XR}, s37, v{V_L16}')
    ldsbar()
    stamp()
    jit2 = {}
    for i in range(36):
        if i < 14: jit2[i] = (S_O14A if i == 0 else None, i * 1024)
        elif i < 28: jit2[i] = (S_O14B if i == 14 else None, (i - 14) * 1024)
        elif i < 32: jit2[i] = (S_O28A if i == 28 else None, (i - 28) * 1024)
        else: jit2[i] = (S_O28B if i == 32 else None, (i - 32) * 1024)
    unit([acc(0, 0), acc(0, 1)], list(range(36)), gelu_tile(1, 3), '0', jit=jit2, barriers={28: ldsbar}, fill_until=56)
    stamp()
    adv = [f's_add_u32 s{S_P0}, s{S_P0}, 4096', f's_add_u32 s{S_P1}, s{S_P1}, 4096']
    unit([V_SH, acc(1, 1)], list(range(14)) + list(range(28, 32)), store_stream([(acc(0, 0), S_P0), (acc(0, 1), S_P1)]), '0', delay=4)
    for x in adv: e(x)
    unit([acc(0, 0), acc(0, 1)], list(range(36)), xchg_send(acc(1, 1), V_XW, XO2), '0', delay=8, fill_until=24)
    ldsbar()
    unit([acc(1, 0), acc(1, 1)], list(range(36)),
         store_stream([(acc(0, 0), S_P0), (acc(0, 1), S_P1)]) + xchg_recv(V_SH, V_XR, XO2) + store_stream([(V_SH, S_PH)]), '0')
    for x in adv: e(x)
    unit([acc(0, 0), acc(0, 1)], list(range(36)), store_stream([(acc(1, 0), S_P0), (acc(1, 1), S_P1)]), '0', fill_until=((18 - 2 * extra_ring + 4) if fuse else None))
    for x in adv: e(x)
    if not fuse:
        for x in store_stream([(acc(0, 0), S_P0), (acc(0, 1), S_P1)]): e(x, vm='st')
    else:
        assert all(t != 'st' for t in e.vm), e.vm
        stamp(pstamps)
        e(f's_load_dwordx2 s[4:5], s[0:1], {Lo.KA["b2"]}', f's_load_dwordx2 s[6:7], s[0:1], {Lo.KA["out"]}')
        e('s_lshl_b32 s33, s17, 3', 's_add_u32 s46, s33, s16', 's_lshl_b32 s46, s46, 7', f's_add_u32 s46, s46, {Lo.FLG:#x}')
        e('s_lshl_b32 s33, s33, 7', f's_add_u32 s47, s33, {Lo.FLG:#x}')
        e('v_mov_b32 v15, 0')
        def raise_flag(word):
            e('v_mov_b32 v14, 1', 's_mov_b64 exec, 1')
            e(f'buffer_store_dword v14, v15, s[{S_WS}:{S_WS+3}], s46 offen offset:{4*word} sc1')
            e('s_mov_b64 exec, -1')
        e('s_barrier')
        e(f's_cmp_lg_u32 s{S_W}, 0', 's_cbranch_scc1 K4_NF1')
        sv = list(e.vm)
        raise_flag(0)
        e.label('K4_NF1')
        e.vm = sv
        e(f's_lshl_b32 s33, s{S_W}, 12', f's_add_u32 s33, s33, {LDS_Y + 16384}', f'v_add_u32 v2, s33, v{V_L16}')
        for sl in range(2):
            for q in range(2):
                hp = V_HP + 4 * q
                for j in range(4): e(f'v_cvt_pk_bf16_f32 v{hp+j}, v{acc(0, sl)+8*q+2*j}, v{acc(0, sl)+8*q+2*j+1}')
                e(f'ds_write_b128 v2, {rng(hp,4)} offset:{sl*2048 + q*1024}', lg='d')
        e(f'v_mov_b32 v14, 0', f'v_mov_b32 v173, {LDS_Y + 8192}', 'ds_write_b32 v173, v14')
        e('s_waitcnt lgkmcnt(0)', 's_barrier')
        e.lg = []
        e.srd(S_B1, 4, 5, Lo.D * 2)
        e.srd(36, 6, 7, Lo.L * Lo.D * 2)
        e('s_mul_i32 s34, s17, 589824', f's_add_u32 s34, s34, {Lo.PART:#x}')
        e(f'v_lshrrev_b32 v2, 4, v{V_L16}', 'v_and_b32 v3, 31, v2', 'v_lshrrev_b32 v4, 5, v2', 'v_lshlrev_b32 v4, 4, v4')
        e('v_lshlrev_b32 v172, 3, v3')
        e('v_mul_u32_u24 v3, 1152, v3', f'v_lshlrev_b32 v5, 3, v{V_L16}')
        PB, XB, AC = 16, 112, 160
        SI = [48, 49, 50]
        def early_idx(dst, i_expr):
            e('s_mul_i32 s40, s16, 7', *i_expr)
            e('s_lshr_b32 s41, s40, 2', 's_mul_hi_u32 s42, s41, 0x55555556', 's_add_u32 s42, s42, s41', 's_add_u32 s43, s41, 4',
              's_cmp_ge_u32 s41, 12', 's_cselect_b32 s42, s43, s42')
            e('s_lshl_b32 s42, s42, 2', 's_and_b32 s40, s40, 3', f's_add_u32 s{dst}, s42, s40')
        def late_idx(dst, i):
            e('s_lshl_b32 s40, s16, 1', f's_add_u32 s40, s40, {i}', 's_lshr_b32 s41, s40, 2', 's_lshl_b32 s41, s41, 4', 's_add_u32 s41, s41, 12',
              's_and_b32 s40, s40, 3', f's_add_u32 s{dst}, s41, s40')
        def side_loads(k):
            i = SI[k]
            e(f's_lshr_b32 s42, s{i}, 2', 's_lshl_b32 s42, s42, 6', f's_and_b32 s43, s{i}, 1', 's_lshl_b32 s43, s43, 5', 's_add_u32 s42, s42, s43')
            e(f's_bfe_u32 s43, s{i}, 0x10001', 's_lshl_b32 s43, s43, 5', 's_lshl_b32 s44, s17, 6', 's_add_u32 s43, s43, s44', 's_mul_i32 s43, s43, 1152', 's_add_u32 s43, s43, s42')
            e(f'v_add_u32 v{6+2*k}, s42, v4')
            e(f'v_add_u32 v{7+2*k}, v3, v4', f'v_add_u32 v{7+2*k}, s43, v{7+2*k}')
            e(f's_mov_b32 s45, {Lo.MODB + 5*576*2:#x}')
            if not ln2:
                e(f's_mov_b32 s44, {Lo.X2:#x}')
                e(f'buffer_load_dwordx4 v[{XB+12*k}:{XB+12*k+3}], v{7+2*k}, s[{S_WS}:{S_WS+3}], s44 offen', vm=('p', k))
            else:
                e(f'v_lshlrev_b32 v12, 11, v{6+2*k}', f's_bfe_u32 s44, s{i}, 0x10001', 's_lshl_b32 s44, s44, 5', 's_lshl_b32 s51, s17, 6', 's_add_u32 s44, s44, s51',
                  's_lshl_b32 s44, s44, 3', f's_add_u32 s44, s44, {Lo.AT4:#x}', 'v_add_u32 v12, v12, v172', 'v_add_u32 v13, 16384, v12')
                e(f'buffer_load_dwordx2 v[{XB+12*k}:{XB+12*k+1}], v12, s[{S_WS}:{S_WS+3}], s44 offen', vm=('p', k))
                e(f'buffer_load_dwordx2 v[{XB+12*k+2}:{XB+12*k+3}], v13, s[{S_WS}:{S_WS+3}], s44 offen', vm=('p', k))
            e(f'buffer_load_dwordx4 v[{XB+12*k+4}:{XB+12*k+7}], v{6+2*k}, s[{S_WS}:{S_WS+3}], s45 offen', vm=('p', k))
            e(f'buffer_load_dwordx4 v[{XB+12*k+8}:{XB+12*k+11}], v{6+2*k}, s[{S_B1}:{S_B1+3}], 0 offen', vm=('p', k))
        def poll(word, lab):
            e('s_mov_b64 exec, 0xff', f's_mov_b32 s35, {spin}')
            e.label(lab)
            e(f'buffer_load_dword v14, v5, s[{S_WS}:{S_WS+3}], s47 offen offset:{4*word} sc1')
            e('s_waitcnt vmcnt(0)')
            e('v_cmp_ne_u32 vcc, 1, v14')
            e('s_sub_u32 s35, s35, 1', 's_cmp_eq_u32 s35, 0', f's_cbranch_scc1 {lab}_X', 's_nop 0', f's_cbranch_vccnz {lab}')
            e.label(lab + '_X')
            e('s_mov_b64 exec, -1')
            e.vm = []; e.hist = []
        def frag_loads(k):
            e(f's_lshl_b32 s41, s{SI[k]}, 10', 's_add_u32 s41, s41, s34')
            for sp in range(8):
                e(f'buffer_load_dwordx4 v[{PB+32*k+4*sp}:{PB+32*k+4*sp+3}], v{V_L16}, s[{S_WS}:{S_WS+3}], s41 offen sc1', vm=('p', k))
                if sp < 7: e('s_add_u32 s41, s41, 73728')
            side_loads(k)
        def frag_finish(k):
            e.wait_vm(('p', k))
            for sp in range(8):
                for m in range(4):
                    r = PB + 32*k + 4*sp + m
                    if sp == 0: e(f'v_lshlrev_b32 v{AC+2*m}, 16, v{r}', f'v_and_b32 v{AC+2*m+1}, 0xffff0000, v{r}')
                    elif dot2: e(f'v_dot2c_f32_bf16 v{AC+2*m}, v{r}, v174', f'v_dot2c_f32_bf16 v{AC+2*m+1}, v{r}, v175')
                    else:
                        e(f'v_lshlrev_b32 v12, 16, v{r}', f'v_and_b32 v13, 0xffff0000, v{r}')
                        e(f'v_add_f32 v{AC+2*m}, v{AC+2*m}, v12', f'v_add_f32 v{AC+2*m+1}, v{AC+2*m+1}, v13')
            for j in range(4): e(f'v_permlane32_swap_b32 v{AC+j}, v{AC+4+j}')
            for m in range(4):
                for h in range(2):
                    kk = AC + 2*m + h
                    un = (lambda dst, src: f'v_lshlrev_b32 v{dst}, 16, v{src}') if h == 0 else (lambda dst, src: f'v_and_b32 v{dst}, 0xffff0000, v{src}')
                    e(un(12, XB+12*k+8+m), un(13, XB+12*k+4+m), un(14, XB+12*k+m))
                    e(f'v_add_f32 v{kk}, v{kk}, v12', f'v_fma_f32 v{kk}, v{kk}, v13, v14')
            for m in range(4): e(f'v_cvt_pk_bf16_f32 v{AC+8+m}, v{AC+2*m}, v{AC+2*m+1}')
            e(f'buffer_store_dwordx4 v[{AC+8}:{AC+11}], v{7+2*k}, s[36:39], 0 offen', vm='o')
        if dot2: e('v_mov_b32 v174, 0x3f80', 'v_mov_b32 v175, 0x3f800000')
        e(f's_cmp_eq_u32 s{S_W}, 3', 's_cbranch_scc1 K4_W3')
        base_state = (list(e.vm), list(e.hist))
        early_idx(SI[0], [f's_add_u32 s40, s40, s{S_W}'])
        early_idx(SI[1], [f's_add_u32 s40, s40, s{S_W}', 's_add_u32 s40, s40, 3'])
        early_idx(SI[2], ['s_add_u32 s40, s40, 6'])
        stamp('tail')
        e(f's_cmp_lg_u32 s{S_W}, 0', 's_cbranch_scc1 K4_RELAY')
        poll(0, 'K4_POLL1')
        e('v_mov_b32 v14, 1', 'ds_write_b32 v173, v14')
        e('s_branch K4_GO')
        e.label('K4_RELAY')
        e(f's_mov_b32 s35, {spin * 16}')
        e.label('K4_RELAY_L')
        e('ds_read_b32 v14, v173', 's_waitcnt lgkmcnt(0)', 'v_cmp_ne_u32 vcc, 1, v14', 's_sub_u32 s35, s35, 1', 's_cmp_eq_u32 s35, 0', 's_cbranch_scc1 K4_GO', 's_nop 0', 's_cbranch_vccnz K4_RELAY_L')
        e.label('K4_GO')
        e.vm = []; e.hist = []; e.lg = []
        stamp('tail')
        frag_loads(0); frag_loads(1)
        e(f's_cmp_lg_u32 s{S_W}, 0', 's_cbranch_scc1 K4_TWO')
        sv = (list(e.vm), list(e.hist))
        frag_loads(2)
        e.wait_vm(('p', 0)); stamp('tail')
        frag_finish(0); frag_finish(1); frag_finish(2)
        e('s_branch K4_RDONE')
        e.label('K4_TWO')
        e.vm, e.hist = list(sv[0]), list(sv[1])
        frag_finish(0); frag_finish(1)
        e('s_branch K4_RDONE')
        e.label('K4_W3')
        e.vm, e.hist = list(base_state[0]), []
        e(f'v_add_u32 v2, {LDS_Y + 16384}, v{V_L16}')
        e('s_lshl_b32 s33, s17, 3', 's_add_u32 s33, s33, s16', 's_mul_i32 s33, s33, 73728', f's_add_u32 s33, s33, {Lo.PART + 3*4096:#x}')
        for wv in range(4):
            for sl in range(2):
                for q in range(2):
                    n = wv * 4 + sl * 2 + q
                    e(f'ds_read_b128 v[{16+4*n}:{19+4*n}], v2 offset:{wv*4096 + sl*2048 + q*1024}', lg=('d', n))
            if wv == 1: e.wait_lg(('d', 3))
        for wv in range(4):
            for sl in range(2):
                for q in range(2):
                    n = wv * 4 + sl * 2 + q
                    e.wait_lg(('d', n))
                    u = sl ^ (wv & 1)
                    e(f'buffer_store_dwordx4 v[{16+4*n}:{19+4*n}], v{V_L16}, s[{S_WS}:{S_WS+3}], s33 offen offset:{u*2048 + q*1024}{store_mod}', vm='st')
            if wv < 3: e('s_add_u32 s33, s33, 16384')
        late_idx(SI[0], 0); late_idx(SI[1], 1)
        e('s_waitcnt vmcnt(0)')
        e.vm = []
        raise_flag(1)
        poll(1, 'K4_POLL2')
        frag_loads(0); frag_loads(1)
        frag_finish(0); frag_finish(1)
        e.label('K4_RDONE')
    if stamps:
        stamp(pstamps)
        e('s_waitcnt vmcnt(0)')
        stamp(pstamps)
        e(f's_load_dwordx2 s[4:5], s[0:1], {Lo.KA["dbg"]}', 's_waitcnt lgkmcnt(0)')
        e.srd(12, 4, 5, 256)
        e('s_cmp_ge_u32 s2, 2', 's_cbranch_scc1 K4_END')
        e('s_lshl_b32 s40, s2, 2', f's_add_u32 s40, s40, s{S_W}', 's_lshl_b32 s40, s40, 5', 'v_mov_b32 v12, s40')
        for i in range(1, nst[0]):
            e(f's_sub_u32 s41, s{56+2*i}, s56', 'v_mov_b32 v13, s41', f'buffer_store_dword v13, v12, s[12:15], 0 offen offset:{4*(i-1)}', vm='dbg')
    e.label('K4_END')
    e('s_endpgm')
    return e

if __name__ == '__main__':
    import asmlib
    e = build()
    errs = asmlib.check(e.lines)
    print('instructions', len(e.lines), 'nops', e.nops, 'hazard errors', len(errs))
    for x in errs[:20]: print(x)
```

```python
import sys, gen_all, k1_prep, k2_conv, k3_ln2, k5_red
import k4_mlp2 as k4_mlp
TL = [False]
CS = [None]
OPT = {}
def make(k4=None, prefetch=True, stamps=False, order=None, timeline=False, cstamps=None, opt=None):
    OPT.clear(); OPT.update(opt or {})
    TL[0] = timeline
    if order is None: order = (1, 2, 4) if (k4 or {}).get('ln2', True) else ((1, 2, 3, 4) if (k4 or {}).get('fuse', True) else (1, 2, 3, 4, 5))
    CS[0] = cstamps
    if not prefetch or 2 not in order:
        return _make(k4, False, stamps, order, 0, 0, 0)
    syms, size = gen_all.symbols(_make(k4, True, stamps, order, 4096, 0, 4096))
    span4 = size - syms[k4_mlp.NAME]
    nb4 = (span4 + 4095) // 4096 * 4096
    pad = nb4 - span4
    span2 = syms[k4_mlp.NAME] - syms[k2_conv.NAME]
    nb2 = (span2 + 4095) // 4096 * 4096
    return _make(k4, True, stamps, order, nb2, pad, nb4)

def _make(k4, prefetch, stamps, order, pf_bytes, tail_pad, pf4_bytes=0):
    k4 = k4 or {}
    ks = {
     1: (k1_prep.NAME, k1_prep.build(prefetch_from=(k2_conv.NAME if prefetch else None), prefetch_bytes=pf_bytes, R=k4.get('R', 4), **OPT.get('k1', {})), k1_prep.GRID, 256, k1_prep.LDS_BYTES, 72, 80, 72),
     2: (k2_conv.NAME, k2_conv.build(R=k4.get('R', 4), pf_label=(k4_mlp.NAME if (prefetch and pf4_bytes) else None), pf_bytes=pf4_bytes, **OPT.get('k2', {})), k2_conv.GRID, 512, k2_conv.LDS_BYTES, 216, 64, 216),
     3: (k3_ln2.NAME, k3_ln2.build(**OPT.get('k3', {})), 256, 256, k3_ln2.LDS_BYTES, 104, 48, 104),
     4: (k4_mlp.NAME, k4_mlp.build(stamps=stamps, **k4), 256, 256, k4_mlp.LDS_BYTES, 512, 80, 256),
     5: (k5_red.NAME, k5_red.build(), 576, 256, 0, 80, 48, 80),
    }
    return gen_all.assemble([ks[i] for i in order], tail_pad, TL[0], CS[0])
if __name__ == '__main__':
    open(sys.argv[1], 'w').write(make())
```

```python
from emit import Em
import layout as Lo
from common import f2h, lo, hi

NAME = 'k2_conv_kernel'
HZ, KE, KO, WSTR = 0, 4608, 4608 + 4160, 13120
XRS = 4 * WSTR
W2T = XRS + 16384
W1T = W2T + 36864
CNT = W1T + 36864
LDS_BYTES = CNT + 64
NCONV = 144
GRID = NCONV

def build(R=4, sm=' sc1', wm=' sc1', pf_label=None, pf_bytes=0, skip_w2=False, rel_early='', DMA_AT=(4, 16, 28), W1_AT=4):
    e = Em()
    e.label(NAME)
    e(f's_cmp_ge_u32 s2, {GRID}', 's_cbranch_scc1 K2_END')
    e(f's_load_dwordx2 s[4:5], s[0:1], {Lo.KA["ws"]}')
    e('v_lshrrev_b32 v1, 6, v0', 'v_and_b32 v2, 63, v0')
    e('v_readfirstlane_b32 s20, v1')
    e('s_cmp_ge_u32 s20, 4', 's_cbranch_scc1 K2_REL')
    e(f's_load_dwordx2 s[6:7], s[0:1], {Lo.KA["Dskip"]}')
    e('s_lshl_b32 s21, s2, 2', 's_add_u32 s21, s21, s20')
    e(f's_mul_i32 s22, s20, {WSTR}')
    e('s_waitcnt lgkmcnt(0)')
    e.srd(8, 4, 5, Lo.WS_END)
    e.srd(12, 6, 7, Lo.D * 2)
    e('s_lshl_b32 s16, s21, 1', 'v_mov_b32 v15, 0')
    e('buffer_load_ushort v68, v15, s[12:15], s16 offen', vm='mod')
    e('v_and_b32 v3, 3, v2', 'v_mul_u32_u24 v3, 13824, v3', 'v_lshrrev_b32 v4, 2, v2', 'v_mul_u32_u24 v5, 2304, v4', 'v_add_u32 v3, v3, v5')
    e('s_lshl_b32 s16, s21, 2', f's_add_u32 s16, s16, {Lo.MODP:#x}')
    e('buffer_load_dword v6, v3, s[8:11], s16 offen', vm='mod')
    e('v_lshrrev_b32 v3, 3, v2', 'v_mul_u32_u24 v3, 18432, v3', 'v_and_b32 v5, 7, v2', 'v_lshlrev_b32 v5, 4, v5', 'v_add_u32 v3, v3, v5')
    e(f's_mul_i32 s16, s20, {32*18432}', 's_lshl_b32 s17, s2, 7', 's_add_u32 s16, s16, s17', f's_add_u32 s17, s16, {Lo.XR:#x}', f's_add_u32 s16, s16, {Lo.XT:#x}')
    e(f's_add_u32 s27, s22, {KE}', 's_lshl_b32 s28, s20, 12', f's_add_u32 s28, s28, {XRS}')
    for q in range(4):
        e('s_mov_b32 m0, s27')
        e('buffer_load_dwordx4 v3, s[8:11], s16 offen lds', vm='x')
        if q < 3: e(f's_add_u32 s16, s16, {8*18432}', 's_add_u32 s27, s27, 1024')
    XR, EA, EB = 16, 32, 48
    e('v_lshlrev_b32 v7, 4, v2')
    e('s_lshl_b32 s16, s21, 12', f's_add_u32 s16, s16, {Lo.KREV:#x}')
    for u in range(4):
        e(f'buffer_load_dwordx4 v[{EA+4*u}:{EA+4*u+3}], v7, s[8:11], s16 offen offset:{1024*u}', vm='k')
        e(f'buffer_load_dwordx4 v[{EB+4*u}:{EB+4*u+3}], v7, s[8:11], s16 offen offset:{1024*u+4}', vm='k')
    for q in range(4):
        e('s_mov_b32 m0, s28')
        e('buffer_load_dwordx4 v3, s[8:11], s17 offen lds', vm='xr')
        if q < 3: e(f's_add_u32 s17, s17, {8*18432}', 's_add_u32 s28, s28, 1024')
    VB, VA, VE = 204, 205, 209
    e('v_and_b32 v69, 15, v2', 'v_lshrrev_b32 v70, 4, v2')
    e(f'v_lshlrev_b32 v{VB}, 5, v69', 'v_lshlrev_b32 v71, 4, v70', f'v_add_u32 v{VB}, v{VB}, v71', f's_add_u32 s29, s22, {HZ+480}', f'v_add_u32 v{VB}, s29, v{VB}')
    e(f'v_lshlrev_b32 v{VE}, 5, v69', 'v_lshlrev_b32 v210, 3, v70', f'v_add_u32 v{VE}, v{VE}, v210', f'v_add_u32 v{VE}, s22, v{VE}')
    e('v_sub_u32 v210, 2031, v69', 'v_lshrrev_b32 v210, 1, v210', 'v_lshlrev_b32 v210, 2, v210', 'v_add_u32 v210, v210, v71')
    e('v_and_b32 v211, 1, v69', f'v_mul_u32_u24 v211, {KO-KE}, v211', f'v_sub_u32 v211, {KO}, v211', 'v_add_u32 v210, v210, v211', 'v_add_u32 v210, s22, v210')
    for q in range(4):
        e(f'v_subrev_u32 v{VA+q}, {512*(2*q+1)}, v210')
    e(f'v_mov_b32 v212, {CNT}', 'v_mov_b32 v214, 0', 'v_mov_b32 v215, 0', 'ds_write_b64 v212, v[214:215]', lg='z')
    e('v_mov_b32 v64, 0', 'v_mov_b32 v65, 0', 'v_mov_b32 v66, 0', 'v_mov_b32 v67, 0')
    e('v_add_u32 v8, s22, v7')
    e('s_mov_b32 exec_hi, 0')
    e(f'ds_write_b128 v8, v[64:67] offset:{HZ}', lg='z')
    e('s_mov_b64 exec, -1')
    e.wait_vm('mod')
    if Lo.KSPLIT < 4:
        e('v_and_b32 v9, 3, v2', f'v_cmp_gt_u32 vcc, {Lo.KSPLIT}, v9', 'v_cndmask_b32 v6, 0, v6, vcc')
    e('v_add_f32_dpp v6, v6, v6 quad_perm:[1,0,3,2] row_mask:0xf bank_mask:0xf', 'v_add_f32_dpp v6, v6, v6 quad_perm:[2,3,0,1] row_mask:0xf bank_mask:0xf')
    e('v_cvt_pk_bf16_f32 v6, v6, v6', 'v_lshlrev_b32 v9, 16, v6')
    e('v_add_f32 v10, 1.0, v9', 'v_cvt_pk_bf16_f32 v10, v10, v10')
    e('v_lshlrev_b32 v11, 16, v10')
    e('v_readlane_b32 s24, v9, 0', 'v_readlane_b32 s25, v11, 4')
    e('v_readfirstlane_b32 s23, v68', 's_lshl_b32 s23, s23, 16')
    e('v_readlane_b32 s26, v9, 8')
    e('v_mul_u32_u24 v5, 1152, v4', 's_lshl_b32 s16, s21, 1', f's_add_u32 s16, s16, {Lo.MODB:#x}')
    e('s_mov_b64 exec, 0x111111')
    e('buffer_store_short v6, v5, s[8:11], s16 offen', vm='ms')
    e('s_mov_b64 exec, -1')
    e('s_lshl_b32 s16, s2, 8', f's_add_u32 s16, s16, {Lo.FLG:#x}', 'v_lshlrev_b32 v12, 7, v2', 'v_mov_b32 v15, 0')
    e('s_cmp_lg_u32 s20, 0', 's_cbranch_scc1 K2_NOCLR', 's_cmp_ge_u32 s2, 128', 's_cbranch_scc1 K2_NOCLR')
    sv = list(e.vm)
    e('s_mov_b64 exec, 3')
    e('v_mov_b32 v14, 0', 'buffer_store_dwordx2 v[14:15], v12, s[8:11], s16 offen sc1')
    e('s_mov_b64 exec, -1')
    e.label('K2_NOCLR')
    e.vm = sv
    e('v_mov_b32 v14, s24')
    e('v_lshrrev_b32 v10, 1, v2', 'v_lshlrev_b32 v10, 7, v10', 'v_and_b32 v11, 1, v2', 'v_lshlrev_b32 v11, 4, v11', 'v_add_u32 v10, v10, v11', 's_lshl_b32 s16, s20, 5', 'v_add_u32 v15, s16, v10')
    e.wait_vm('x')
    e('s_barrier')
    for u in range(4):
        e(f'ds_read_b128 v[{XR+4*u}:{XR+4*u+3}], v15 offset:{u*WSTR + KE}', lg=('xs', u))
    for u in range(4):
        e.wait_lg(('xs', u))
        for k in range(4):
            r = XR + 4*u + k
            e(lo(10, r), hi(11, r), 'v_fma_f32 v10, v10, s25, v14', 'v_fma_f32 v11, v11, s25, v14', f'v_cvt_pk_bf16_f32 v{r}, v10, v11')
        e(f'ds_write_b128 v8, v[{XR+4*u}:{XR+4*u+3}] offset:{HZ+512+1024*u}', lg='h')
    e('s_barrier')
    e('s_mov_b64 exec, 3')
    e(f'ds_write_b128 v8, v[64:67] offset:{KE+4096}', lg='z')
    e(f'ds_write_b128 v8, v[64:67] offset:{KO+4096}', lg='z')
    e('s_mov_b64 exec, -1')
    e('s_waitcnt lgkmcnt(2)')
    e.wait_vm('k')
    e('v_cmp_eq_u32 vcc, 63, v2', 'v_mov_b32 v10, -1', 'v_mov_b32 v11, 0xffff', 'v_cndmask_b32 v10, v10, v11, vcc')
    for u in range(4):
        e(f'ds_write_b128 v8, v[{EA+4*u}:{EA+4*u+3}] offset:{KE+1024*u}', lg='k')
        for k in range(4):
            e(f'v_alignbit_b32 v{EB+4*u+k}, v{EB+4*u+k}, v{EA+4*u+k}, 16')
        if u == 3: e(f'v_and_b32 v{EB+15}, v{EB+15}, v10')
        e(f'ds_write_b128 v8, v[{EB+4*u}:{EB+4*u+3}] offset:{KO+1024*u}', lg='k')
    ACC = 16
    SA, SB = [48, 112], [80, 144]
    def rendezvous(k, lab):
        e('s_waitcnt lgkmcnt(0)', 'v_mov_b32 v213, 1', 's_mov_b64 exec, 1', f'ds_add_u32 v212, v213 offset:{4*k}', 's_mov_b64 exec, -1', f's_mov_b32 s57, {1 << 20}')
        e.label(lab)
        e(f'ds_read_b32 v213, v212 offset:{4*k}', 's_waitcnt lgkmcnt(0)', 'v_cmp_gt_u32 vcc, 4, v213', 's_sub_u32 s57, s57, 1', 's_cmp_eq_u32 s57, 0',
          f's_cbranch_scc1 {lab}_X', 's_nop 0', f's_cbranch_vccnz {lab}')
        e.label(lab + '_X')
        e.lg = []; e.hist = []
    def reads(st):
        out = []
        for p in range(8):
            out.append(f'ds_read_b128 v[{SB[st]+4*p}:{SB[st]+4*p+3}], v{VB} offset:{512*p}')
            q, odd = p >> 1, p & 1
            o = 0 if odd else 128
            out.append(f'ds_read2_b32 v[{SA[st]+4*p}:{SA[st]+4*p+1}], v{VA+q} offset0:{o} offset1:{o+1}')
            out.append(f'ds_read2_b32 v[{SA[st]+4*p+2}:{SA[st]+4*p+3}], v{VA+q} offset0:{o+2} offset1:{o+3}')
        return out
    def step():
        return [f'v_subrev_u32 v{VB}, 64, v{VB}'] + [f'v_subrev_u32 v{VA+q}, 64, v{VA+q}' for q in range(4)]
    if pf_label:
        nch = pf_bytes // 4096
        e(f's_cmp_ge_u32 s2, {8*nch}', 's_cbranch_scc1 K2_NOPF')
        sv = list(e.vm)
        e('s_getpc_b64 s[34:35]')
        e.label('K2_PC')
        e(f's_add_u32 s34, s34, {pf_label}-K2_PC', 's_addc_u32 s35, s35, 0')
        e('s_lshr_b32 s16, s2, 3', 's_lshl_b32 s16, s16, 12', 's_add_u32 s34, s34, s16', 's_addc_u32 s35, s35, 0')
        e('v_lshlrev_b32 v70, 4, v0', 'v_mov_b32 v71, s35', 'v_add_co_u32 v70, vcc, s34, v70', 'v_addc_co_u32 v71, vcc, 0, v71, vcc')
        e('global_load_dwordx4 v[176:179], v[70:71], off')
        e.label('K2_NOPF')
        e.vm = sv
    e.wait_vm('xr')
    e('s_waitcnt lgkmcnt(0)', 's_barrier')
    e.lg = []
    for x in reads(0): e(x)
    for x in step(): e(x)
    for r in range(8):
        st = r & 1
        e('s_waitcnt lgkmcnt(0)')
        rd_ = reads(st ^ 1) if r < 7 else []
        n = 0
        for i in range(8):
            for t in range(i, 8):
                cin = '0' if (r == 0 and i == 0) else f'v[{ACC+4*t}:{ACC+4*t+3}]'
                e(f'v_mfma_f32_16x16x32_bf16 v[{ACC+4*t}:{ACC+4*t+3}], v[{SA[st]+4*i}:{SA[st]+4*i+3}], v[{SB[st]+4*(t-i)}:{SB[st]+4*(t-i)+3}], {cin}')
                n += 1
                if rd_ and n >= 2: e(rd_.pop(0))
        if r < 7:
            for x in step(): e(x)
    e.lg = []
    e('s_waitcnt lgkmcnt(0)')
    e('v_and_b32 v14, 15, v2', 'v_lshlrev_b32 v14, 7, v14', 'v_lshrrev_b32 v15, 4, v2', 'v_lshlrev_b32 v15, 3, v15', 'v_add_u32 v14, v14, v15',
      's_lshl_b32 s16, s20, 5', f's_add_u32 s16, s16, {XRS}', 'v_add_u32 v14, s16, v14')
    def ep_reads(t):
        e(f'ds_read_b64 v[{48+4*t}:{49+4*t}], v{VE} offset:{HZ+512+512*t}', lg=('h', t))
        e(f'ds_read_b64 v[{50+4*t}:{51+4*t}], v14 offset:{2048*t}', lg=('h', t))
    for t in range(4): ep_reads(t)
    for t in range(8):
        e.wait_lg(('h', t))
        r = 48 + 4*t
        e(lo(10, r), hi(11, r), lo(12, r+1), hi(13, r+1))
        for k in range(4):
            e(f'v_fma_f32 v{10+k}, v{10+k}, s23, v{ACC+4*t+k}')
        e(lo(4, r+2), hi(5, r+2), lo(6, r+3), hi(7, r+3))
        for k in range(4):
            e(f'v_fma_f32 v{10+k}, v{10+k}, s26, v{4+k}')
        e(f'v_cvt_pk_bf16_f32 v{r}, v10, v11', f'v_cvt_pk_bf16_f32 v{r+1}, v12, v13')
        e(f'ds_write_b64 v{VE}, v[{r}:{r+1}] offset:{KE+512*t}', lg='aw')
        if t + 4 < 8: ep_reads(t + 4)
    rendezvous(1, 'K2_RV1')
    e('v_bfe_u32 v10, v2, 2, 2', f'v_mul_u32_u24 v10, {WSTR}, v10', 'v_lshrrev_b32 v11, 4, v2', 'v_lshlrev_b32 v11, 5, v11', 'v_add_u32 v10, v10, v11',
      'v_and_b32 v11, 3, v2', 'v_lshlrev_b32 v11, 3, v11', 'v_add_u32 v10, v10, v11', 's_lshl_b32 s16, s20, 10', 'v_add_u32 v10, s16, v10')
    e('v_lshlrev_b32 v11, 3, v2', 's_lshl_b32 s16, s2, 14', 's_lshl_b32 s17, s20, 12', 's_add_u32 s16, s16, s17', f's_add_u32 s16, s16, {Lo.AT4:#x}')
    e.lg = []
    for q in range(8):
        e(f'ds_read_b64_tr_b16 v[{16+2*q}:{17+2*q}], v10 offset:{KE+128*q}', lg=('t', q))
    for q in range(8):
        e.wait_lg(('t', q))
        e(f'buffer_store_dwordx2 v[{16+2*q}:{17+2*q}], v11, s[8:11], s16 offen offset:{512*q}{sm}', vm='o')
    e('s_endpgm')
    e.label('K2_REL')
    e.hist = []; e.vm = []; e.lg = []
    e(f's_load_dwordx2 s[40:41], s[0:1], {Lo.KA["w1"]}', f's_load_dwordx2 s[42:43], s[0:1], {Lo.KA["w2"]}')
    e('s_sub_u32 s21, s20, 4', 's_lshl_b32 s22, s2, 2', 's_add_u32 s22, s22, s21')
    e('s_mul_i32 s23, s21, 18432', f's_add_u32 s23, s23, {W2T}')
    e('s_lshr_b32 s24, s22, 4', 's_and_b32 s25, s22, 15')
    e('s_mul_i32 s26, s24, 147456', 's_mul_i32 s27, s25, 576', 's_add_u32 s26, s26, s27')
    e('s_mul_i32 s27, s25, 9', 's_mul_i32 s27, s27, 36', 's_add_u32 s27, s27, s24', 's_lshl_b32 s27, s27, 10', f's_add_u32 s27, s27, {Lo.W1F:#x}')
    e('s_lshr_b32 s28, s22, 1', 's_and_b32 s29, s22, 1')
    e('s_mul_i32 s30, s28, 18432', 's_mul_i32 s31, s29, 576', 's_add_u32 s30, s30, s31')
    e('s_lshr_b32 s31, s28, 1', 's_and_b32 s32, s28, 1')
    e('s_mul_hi_u32 s33, s31, 0x0e38e38f', 's_mul_i32 s34, s33, 18', 's_sub_u32 s34, s31, s34')
    e('s_lshr_b32 s16, s34, 2', 's_and_b32 s17, s34, 3', 's_mul_i32 s35, s16, 3', 's_add_u32 s35, s35, s17', 's_add_u32 s16, s16, 14',
      's_cmp_eq_u32 s17, 3', 's_cselect_b32 s35, s16, s35', 's_sub_u32 s16, s34, 4', 's_cmp_ge_u32 s34, 16', 's_cselect_b32 s35, s16, s35')
    e('s_mul_i32 s16, s33, 18', 's_mul_i32 s17, s29, 9', 's_add_u32 s16, s16, s17', 's_mul_i32 s16, s16, 36', 's_lshl_b32 s17, s35, 1', 's_add_u32 s16, s16, s17',
      's_add_u32 s16, s16, s32', 's_lshl_b32 s16, s16, 10', f's_add_u32 s36, s16, {Lo.W2F:#x}')
    for q in range(9):
        e(f'v_add_u32 v3, {64*q}, v2', 'v_mul_u32_u24 v4, 1821, v3', 'v_lshrrev_b32 v4, 16, v4', 'v_mul_u32_u24 v5, 36, v4', 'v_sub_u32 v5, v3, v5', 'v_lshlrev_b32 v5, 4, v5')
        e(f'v_mul_u32_u24 v{16+q}, 9216, v4', f'v_add_u32 v{16+q}, v{16+q}, v5', f'v_mul_u32_u24 v{26+q}, 1152, v4', f'v_add_u32 v{26+q}, v{26+q}, v5')
    e('v_bfe_u32 v5, v2, 4, 1', 'v_lshlrev_b32 v5, 5, v5', 'v_and_b32 v6, 3, v2', 'v_lshlrev_b32 v6, 3, v6', 'v_add_u32 v5, v5, v6', 'v_add_u32 v5, s23, v5')
    e('v_lshrrev_b32 v6, 5, v2', 'v_bfe_u32 v7, v2, 2, 2', 'v_lshlrev_b32 v8, 3, v6', 'v_add_u32 v8, v8, v7', 'v_mul_u32_u24 v8, 576, v8', 'v_add_u32 v8, v8, v5')
    e('v_lshlrev_b32 v9, 2, v6', 'v_add_u32 v9, v9, v7', 'v_mul_u32_u24 v9, 576, v9', 'v_add_u32 v9, v9, v5', 'v_add_u32 v9, 9216, v9', 'v_lshlrev_b32 v10, 4, v2')
    e('s_waitcnt lgkmcnt(0)')
    e.srd(8, 4, 5, Lo.WS_END)
    e.srd(44, 40, 41, Lo.F * Lo.D * 2)
    e.srd(48, 42, 43, Lo.F * Lo.D * 2)
    def dma_w1():
        for q in range(9):
            e(f's_add_u32 s37, s23, {1024*q}', 's_mov_b32 m0, s37')
            e(f'buffer_load_dwordx4 v{16+q}, s[44:47], s26 offen lds', vm='w1')
    def dma_w2():
        for q in range(9):
            e(f's_add_u32 s37, s23, {9216 + 1024*q}', 's_mov_b32 m0, s37')
            e(f'buffer_load_dwordx4 v{26+q}, s[48:51], s30 offen lds', vm='w2')
    order = []
    if rel_early in ('w1', 'both'): dma_w1(); order.append('w1')
    if rel_early in ('w2', 'both'): dma_w2(); order.append('w2')
    e('s_barrier'); e('s_barrier'); e('s_barrier')
    if 'w1' not in order: dma_w1(); order.append('w1')
    if 'w2' not in order: dma_w2(); order.append('w2')
    JR = 36
    def jobs(kind):
        addr, lo2, ptr, stride = (8, 4 * 576, 27, 36864) if kind == 'w1' else (9, 8 * 576, 36, 36864)
        e.wait_vm(kind)
        def rd(q):
            r = JR + 4 * (q % 5)
            e(f'ds_read_b64_tr_b16 v[{r}:{r+1}], v{addr} offset:{64*q}', f'ds_read_b64_tr_b16 v[{r+2}:{r+3}], v{addr} offset:{64*q + lo2}', lg=('t', kind, q))
        for q in range(5): rd(q)
        for q in range(9):
            e.wait_lg(('t', kind, q))
            r = JR + 4 * (q % 5)
            e(f'buffer_store_dwordx4 v[{r}:{r+3}], v10, s[8:11], s{ptr} offen{wm}', vm='o')
            e(f's_add_u32 s{ptr}, s{ptr}, {stride}')
            if q + 5 < 9: rd(q + 5)
    for k_ in order: jobs(k_)
    e.label('K2_END')
    e('s_endpgm')
    return e

if __name__ == '__main__':
    import asmlib
    e = build()
    errs = asmlib.check(e.lines)
    print('instructions', len(e.lines), 'nops', e.nops, 'hazard errors', len(errs))
    for x in errs[:20]: print(x)
```

```python
from emit import Em, cost
import layout as Lo
from common import f2h

NAME = 'k4_mlp_kernel'
LDS_Y, LDS_H, LDS_B = 0, 73728, 147456
LDS_Z = LDS_B + 18 * 128
LDS_BYTES = LDS_Z + 128
C0 = -2.302208198
C1 = C0 * 0.044715

V_L16, V_RD, V_BASE, V_HW, V_HWH, V_BR, V_BRH, V_C0, V_XW, V_XR = 1, 2, 4, 6, 8, 9, 10, 11, 12, 13
V_BIAS, V_HP, V_T, V_TMP, V_YX, V_ACC, V_RING, V_SH = 16, 32, 40, 44, 48, 80, 144, 240
S_WS, S_B1 = 8, 12
S_W, S_A, S_SEG1, S_SEG2, S_SEG2H, S_P0, S_P1, S_PH = 20, 21, 22, 23, 24, 25, 26, 27
S_PAR, S_D1, S_DA, S_DB, S_DC, S_DS = 18, 28, 29, 30, 31, 32
S_Y, S_YL = 40, 41
S_C1, S_ONE = 72, 74
S_O18A, S_O18B, S_O14A, S_O14B, S_O28A, S_O28B, S_HW3 = 42, 43, 44, 45, 46, 47, 48

def tile_pos(ftl):
    if ftl >= 16: return 12 + (ftl - 16)
    w, i = ftl >> 2, ftl & 3
    return 3 * w + i if i < 3 else 14 + w

def yreg(i):
    return f'a[{4*i}:{4*i+3}]' if i < 64 else f'v[{V_YX+4*(i-64)}:{V_YX+4*(i-64)+3}]'
def acc(buf, slot): return V_ACC + 32 * buf + 16 * slot
def rng(b, n): return f'v[{b}:{b+n-1}]'

def build(NA=24, store_mod=' sc1', G=2, stamps=False, R=4, prefetch=False, pstamps=False, fuse=True, spin=1 << 22):
    e = Em()
    e.label(NAME)
    nst = [0]
    def stamp(p=False):
        if stamps and (p == pstamps or nst[0] == 0) and nst[0] < 8:
            e(f's_memtime s[{56+2*nst[0]}:{57+2*nst[0]}]'); nst[0] += 1
    stamp()
    e('s_cmp_ge_u32 s2, 256', 's_cbranch_scc1 K4_END')
    e(f's_load_dwordx2 s[4:5], s[0:1], {Lo.KA["ws"]}', f's_load_dwordx2 s[6:7], s[0:1], {Lo.KA["b1"]}')
    e('v_lshrrev_b32 v14, 6, v0', 'v_and_b32 v15, 63, v0')
    e(f'v_readfirstlane_b32 s{S_W}, v14')
    e(f'v_lshlrev_b32 v{V_L16}, 4, v15')
    if R == 1:
        e('s_and_b32 s16, s2, 7', 's_lshr_b32 s17, s2, 3', 's_lshr_b32 s49, s2, 3')
    elif R == 4:
        e('s_and_b32 s16, s2, 1', 's_lshl_b32 s16, s16, 2', 's_bfe_u32 s17, s2, 0x20003', 's_add_u32 s16, s16, s17')
        e('s_bfe_u32 s17, s2, 0x20001', 's_lshl_b32 s17, s17, 3', 's_lshr_b32 s49, s2, 5', 's_add_u32 s17, s17, s49')
    elif R == 8:
        e('s_bfe_u32 s16, s2, 0x30003', 's_and_b32 s17, s2, 7', 's_lshl_b32 s17, s17, 2', 's_lshr_b32 s49, s2, 6', 's_add_u32 s17, s17, s49')
    else:
        e('s_and_b32 s16, s2, 3', 's_lshl_b32 s16, s16, 1', 's_bfe_u32 s17, s2, 0x10003', 's_add_u32 s16, s16, s17')
        e('s_bfe_u32 s17, s2, 0x10002', 's_lshl_b32 s17, s17, 4', 's_lshr_b32 s49, s2, 4', 's_add_u32 s17, s17, s49')
    e(f's_and_b32 s{S_PAR}, s{S_W}, 1', f's_lshr_b32 s19, s{S_W}, 1')
    P = f's{S_PAR}'
    e(f's_mul_i32 s{S_D1}, {P}, -36864', f's_mul_i32 s{S_DA}, {P}, -28672', f's_mul_i32 s{S_DB}, {P}, 18432', f's_mul_i32 s{S_DC}, {P}, -8192')
    e(f's_mul_i32 s{S_DS}, {P}, -10240', f's_add_u32 s{S_DS}, s{S_DS}, 14336')
    e(f's_mul_i32 s{S_O18A}, {P}, 18432', f's_sub_u32 s{S_O18B}, 18432, s{S_O18A}')
    e(f's_mul_i32 s{S_O14A}, {P}, 14336', f's_sub_u32 s{S_O14B}, 14336, s{S_O14A}')
    e(f's_lshl_b32 s{S_O28A}, {P}, 12', f's_sub_u32 s{S_O28B}, {28672+4096}, s{S_O28A}', f's_add_u32 s{S_O28A}, s{S_O28A}, 28672')
    e('s_mul_i32 s33, s16, 18')
    e(f's_lshl_b32 s34, s{S_W}, 2', 's_add_u32 s34, s34, s33', 's_mul_i32 s34, s34, 36864')
    e('s_add_u32 s35, s33, s19', 's_add_u32 s35, s35, 16', 's_mul_i32 s35, s35, 36864')
    e(f's_add_u32 s{S_A}, s35, s{S_O18A}', f's_add_u32 s{S_A}, s{S_A}, {Lo.W1F:#x}')
    e(f's_add_u32 s{S_SEG1}, s34, s{S_O18A}', f's_add_u32 s{S_SEG1}, s{S_SEG1}, {Lo.W1F:#x}')
    e(f's_add_u32 s{S_SEG2}, s34, s{S_O14A}', f's_add_u32 s{S_SEG2}, s{S_SEG2}, {Lo.W2F:#x}')
    e(f's_add_u32 s{S_SEG2H}, s35, s{S_O14A}', f's_add_u32 s{S_SEG2H}, s{S_SEG2H}, {Lo.W2F:#x}')
    e('s_lshl_b32 s34, s17, 3', 's_add_u32 s34, s34, s16', 's_mul_i32 s34, s34, 73728', f's_add_u32 s34, s34, {Lo.PART:#x}')
    e(f's_lshl_b32 s35, s{S_W}, 14', 's_add_u32 s35, s35, s34')
    e(f's_lshl_b32 s36, {P}, 11', f's_add_u32 s{S_P0}, s35, s36', 's_xor_b32 s36, s36, 2048', f's_add_u32 s{S_P1}, s35, s36')
    e('s_add_u32 s35, s19, 16', 's_lshl_b32 s35, s35, 12', 's_add_u32 s35, s35, s34', f's_lshl_b32 s36, {P}, 11', f's_add_u32 s{S_PH}, s35, s36')
    e(f's_mul_i32 s35, {P}, 36864', 's_mul_i32 s36, s19, 18432', 's_add_u32 s36, s36, s35')
    e('s_mul_i32 s37, s17, 73728', 's_add_u32 s37, s37, s36', f's_add_u32 s{S_Y}, s37, {Lo.YF:#x}', f's_add_u32 s{S_YL}, s36, {LDS_Y}')
    e(f's_xor_b32 s36, {P}, 1', 's_mul_i32 s36, s36, 36864')
    e(f'v_add_u32 v{V_BASE}, s35, v{V_L16}', f'v_add_u32 v{V_BASE+1}, s36, v{V_L16}')
    e(f'v_add_u32 v{V_RD}, s{S_O18A}, v{V_BASE}', f'v_add_u32 v{V_RD+1}, s{S_O18A}, v{V_BASE+1}')
    e(f's_mul_i32 s37, s{S_W}, 6144', f's_add_u32 s37, s37, {LDS_H}')
    e(f'v_add_u32 v{V_HW}, s37, v{V_BASE}', f'v_add_u32 v{V_HW+1}, s37, v{V_BASE+1}')
    e(f's_lshl_b32 s{S_HW3}, s{S_W}, 12', f's_sub_u32 s{S_HW3}, 28672, s{S_HW3}')
    e('s_lshl_b32 s37, s19, 11', f's_add_u32 s37, s37, {LDS_H + 24576}', f'v_add_u32 v{V_HWH}, s37, v{V_BASE}')
    e(f's_lshl_b32 s37, s{S_W}, 11', f's_add_u32 s37, s37, {LDS_H + 28672}', f'v_add_u32 v{V_XW}, s37, v{V_L16}')
    e(f's_xor_b32 s37, s{S_W}, 1', 's_lshl_b32 s37, s37, 11', f's_add_u32 s37, s37, {LDS_H + 28672}', f'v_add_u32 v{V_XR}, s37, v{V_L16}')
    e('v_lshrrev_b32 v14, 5, v15', 'v_lshlrev_b32 v14, 6, v14')
    e(f's_lshl_b32 s37, s{S_W}, 9', f's_add_u32 s37, s37, {LDS_B}', f'v_add_u32 v{V_BR}, s37, v14')
    e('s_lshl_b32 s37, s19, 7', f's_add_u32 s37, s37, {LDS_B + 2048}', f's_cmp_eq_u32 {P}, 0', f's_cselect_b32 s37, s37, {LDS_Z}', f'v_add_u32 v{V_BRH}, s37, v14')
    e(f'v_mov_b32 v{V_C0}, {f2h(C0)}')
    e('s_waitcnt lgkmcnt(0)')
    stamp(True)
    e.srd(S_WS, 4, 5, Lo.WS_END)
    e.srd(S_B1, 6, 7, Lo.F * 2)
    e('s_mul_i32 s37, s16, 1152', 'v_lshlrev_b32 v14, 3, v0', 'v_add_u32 v14, s37, v14')
    e(f'buffer_load_dwordx2 v[14:15], v14, s[{S_B1}:{S_B1+3}], 0 offen', vm='bias')

    NF = 324
    st = dict(next=0, off=0)
    free = [rng(V_RING + 4 * k, 4) for k in range(NA)]
    slot_of = {}
    acc_slots = [f'a[{72+4*k}:{75+4*k}]' for k in range(18)] if (ln2 and apre) else []
    def seg(setto=None, delta=None, const=0):
        if setto is not None:
            e(f's_mov_b32 s{S_A}, s{setto}')
        else:
            if st['off'] + const: e(f's_add_u32 s{S_A}, s{S_A}, {st["off"] + const}')
            e(f's_add_u32 s{S_A}, s{S_A}, s{delta}')
        st['off'] = 0
    def load_frag():
        n = st['next']
        if n >= NF: return
        if 18 <= n < 162:
            k = (n - 18) % 36
            if k == 0: seg(setto=S_SEG1); e(f's_add_u32 s{S_SEG1}, s{S_SEG1}, 36864')
            if k == 18: seg(delta=S_D1)
        elif n >= 162:
            m = n - 162
            if 36 <= m < 54:
                k = m - 36
                if k == 0: seg(setto=S_SEG2H)
                if k == 14: seg(delta=S_DS)
            else:
                k = m if m < 36 else (m - 54) % 36
                if k == 0: seg(setto=S_SEG2); e(f's_add_u32 s{S_SEG2}, s{S_SEG2}, 36864')
                if k == 14: seg(delta=S_DA)
                if k == 28: seg(delta=S_DB)
                if k == 32: seg(delta=S_DC)
        r = acc_slots.pop(0) if acc_slots else free.pop(0)
        slot_of[n] = r
        e(f'buffer_load_dwordx4 {r}, v{V_L16}, s[{S_WS}:{S_WS+3}], s{S_A} offen offset:{st["off"]}', vm=('f', n))
        st['off'] += 1024
        if st['off'] == 4096:
            e(f's_add_u32 s{S_A}, s{S_A}, 4096'); st['off'] = 0
        st['next'] = n + 1
    def y_chunk(c):
        for j in range(6):
            if j % 4 == 0: e(f's_mov_b32 m0, s{S_YL}')
            e(f'buffer_load_dwordx4 v{V_L16}, s[{S_WS}:{S_WS+3}], s{S_Y} offen offset:{(j%4)*1024} lds', vm=('y', c))
            if j == 3: e(f's_add_u32 s{S_Y}, s{S_Y}, 4096', f's_add_u32 s{S_YL}, s{S_YL}, 4096')
        e(f's_add_u32 s{S_Y}, s{S_Y}, 2048', f's_add_u32 s{S_YL}, s{S_YL}, 2048')
    if not ln2:
        y_chunk(0)
        for _ in range(6): load_frag()
        y_chunk(1)
        for _ in range(6): load_frag()
        y_chunk(2)
        for _ in range(NA - 12): load_frag()
    else:
        VV = lambda i: (96 + 8 * i)
        e(f'v_lshrrev_b32 v18, 4, v{V_L16}', 'v_and_b32 v16, 15, v18', 'v_lshrrev_b32 v17, 4, v18')
        e('s_lshl_b32 s33, s17, 6', f's_lshl_b32 s34, s{S_W}, 4', 's_add_u32 s33, s33, s34', 'v_add_u32 v18, s33, v16', 'v_lshlrev_b32 v18, 3, v18',
          'v_lshlrev_b32 v19, 15, v17', 'v_add_u32 v18, v18, v19', 'v_add_u32 v19, 16384, v18')
        e('v_lshlrev_b32 v20, 4, v0', f's_mov_b32 s33, {Lo.MODB + 4*576*2:#x}', f's_mov_b32 s34, {Lo.MODB + 3*576*2:#x}')
        e(f'buffer_load_dwordx4 v[24:27], v20, s[{S_WS}:{S_WS+3}], s33 offen', vm='tab')
        e(f'buffer_load_dwordx4 v[28:31], v20, s[{S_WS}:{S_WS+3}], s34 offen', vm='tab')
        e(f's_mov_b32 s{S_Y}, {Lo.AT4:#x}')
        def x_load(i):
            e(f'buffer_load_dwordx2 v[{VV(i)+4}:{VV(i)+5}], v18, s[{S_WS}:{S_WS+3}], s{S_Y} offen', vm=('x', i))
            e(f'buffer_load_dwordx2 v[{VV(i)+6}:{VV(i)+7}], v19, s[{S_WS}:{S_WS+3}], s{S_Y} offen', vm=('x', i))
            if i < 17: e(f's_add_u32 s{S_Y}, s{S_Y}, 131072')
        for i in range(XPRE): x_load(i)
        stamp(True)
    if prefetch:
        nshare = 32 if R == 1 else 16
        e('s_lshl_b32 s37, s49, 8', 'v_add_u32 v44, s37, v0', 'v_lshlrev_b32 v44, 7, v44', 's_mul_i32 s37, s16, 663552')
        step = nshare * 256 * 128
        for base in ((Lo.W2F,) if prefetch == 'w2' else (Lo.W1F, Lo.W2F)):
            e(f's_add_u32 s38, s37, {base:#x}')
            nrep = (663552 + step - 1) // step
            for k in range(nrep):
                if (k + 1) * step > 663552:
                    e(f'v_cmp_gt_u32 vcc, {663552 - k*step}, v44', 's_and_saveexec_b64 s[52:53], vcc')
                e(f'buffer_load_dword v45, v44, s[{S_WS}:{S_WS+3}], s38 offen', vm='pf')
                if (k + 1) * step > 663552: e('s_mov_b64 exec, s[52:53]')
                else: e(f's_add_u32 s38, s38, {step}')
    stamp(True)
    e('v_lshrrev_b32 v46, 3, v0', 'v_lshlrev_b32 v46, 7, v46', 'v_and_b32 v47, 1, v0', 'v_lshlrev_b32 v47, 6, v47', 'v_add_u32 v46, v46, v47',
      'v_bfe_u32 v47, v0, 1, 2', 'v_lshlrev_b32 v47, 4, v47', 'v_add_u32 v46, v46, v47', f'v_add_u32 v46, {LDS_B}, v46')
    e.wait_vm('bias')
    stamp(True)
    e('v_lshlrev_b32 v40, 16, v14', 'v_and_b32 v41, 0xffff0000, v14', 'v_lshlrev_b32 v42, 16, v15', 'v_and_b32 v43, 0xffff0000, v15')
    e('v_cmp_gt_u32 vcc, 144, v0')
    for k in range(4): e(f'v_cndmask_b32 v{40+k}, 0, v{40+k}, vcc')
    e('v_cmp_gt_u32 vcc, 152, v0', 's_and_saveexec_b64 s[38:39], vcc')
    e('ds_write_b128 v46, v[40:43]', lg='bw')
    e('s_mov_b64 exec, s[38:39]')

    if ln2:
        TG, TS = 0, 2304
        e.wait_vm('tab')
        for k in range(4):
            e(f'v_lshlrev_b32 v{32+2*k}, 16, v{24+k}', f'v_and_b32 v{33+2*k}, 0xffff0000, v{24+k}')
            e(f'v_lshlrev_b32 v{48+2*k}, 16, v{28+k}', f'v_and_b32 v{49+2*k}, 0xffff0000, v{28+k}')
        for k in range(0, 8, 2):
            e(f'v_add_f32 v{32+k}, 1.0, v{32+k}', f'v_add_f32 v{33+k}, 1.0, v{33+k}', f'v_cvt_pk_bf16_f32 v24, v{32+k}, v{33+k}',
              f'v_lshlrev_b32 v{32+k}, 16, v24', f'v_and_b32 v{33+k}, 0xffff0000, v24')
        e('v_lshlrev_b32 v20, 5, v0', f'v_add_u32 v20, {LDS_H}, v20', 'v_cmp_gt_u32 vcc, 72, v0', 's_and_saveexec_b64 s[38:39], vcc')
        e(f'ds_write_b128 v20, v[32:35] offset:{TG}', f'ds_write_b128 v20, v[36:39] offset:{TG+16}', f'ds_write_b128 v20, v[48:51] offset:{TS}', f'ds_write_b128 v20, v[52:55] offset:{TS+16}')
        e('s_mov_b64 exec, s[38:39]')
        pr = lambda b: f'v[{b}:{b+1}]'
        def rowsum(dst):
            e(f'v_add_f32 v{dst}, v{dst}, v{dst+1}', f'v_mov_b32 v{dst+1}, v{dst}', f'v_permlane16_swap_b32 v{dst}, v{dst+1}', f'v_add_f32 v{dst}, v{dst}, v{dst+1}',
              f'v_mov_b32 v{dst+1}, v{dst}', f'v_permlane32_swap_b32 v{dst}, v{dst+1}', f'v_add_f32 v{dst}, v{dst}, v{dst+1}',
              f'v_mul_f32 v{dst}, {f2h(1/576)}, v{dst}')
        M, Q, M2, Q2, NM = 20, 22, 24, 28, 30
        def stats():
            e(f'v_pk_add_f32 {pr(M)}, {pr(M)}, {pr(M2)}', f'v_pk_add_f32 {pr(Q)}, {pr(Q)}, {pr(Q2)}')
            rowsum(M); rowsum(Q)
            e(f'v_fma_f32 v{Q}, -v{M}, v{M}, v{Q}', f'v_max_f32 v{Q}, 0, v{Q}', f'v_add_f32 v{Q}, {f2h(1e-5)}, v{Q}', f'v_rsq_f32 v{Q}, v{Q}',
              f'v_mov_b32 v{M+1}, v{M}', f'v_mov_b32 v{Q+1}, v{Q}')
        def accumulate(v, first):
            if first:
                e(f'v_pk_add_f32 {pr(M)}, {pr(v)}, {pr(v+2)}', f'v_pk_add_f32 {pr(M2)}, {pr(v+4)}, {pr(v+6)}',
                  f'v_pk_mul_f32 {pr(Q)}, {pr(v)}, {pr(v)}', f'v_pk_mul_f32 {pr(Q2)}, {pr(v+2)}, {pr(v+2)}')
            else:
                e(f'v_pk_add_f32 {pr(M)}, {pr(M)}, {pr(v)}', f'v_pk_add_f32 {pr(M2)}, {pr(M2)}, {pr(v+4)}',
                  f'v_pk_fma_f32 {pr(Q)}, {pr(v)}, {pr(v)}, {pr(Q)}', f'v_pk_fma_f32 {pr(Q2)}, {pr(v+2)}, {pr(v+2)}, {pr(Q2)}',
                  f'v_pk_add_f32 {pr(M)}, {pr(M)}, {pr(v+2)}', f'v_pk_add_f32 {pr(M2)}, {pr(M2)}, {pr(v+6)}')
            e(f'v_pk_fma_f32 {pr(Q)}, {pr(v+4)}, {pr(v+4)}, {pr(Q)}', f'v_pk_fma_f32 {pr(Q2)}, {pr(v+6)}, {pr(v+6)}, {pr(Q2)}')
        for i in range(18):
            e.wait_vm(('x', i))
            if i == 0: stamp(True); stamp('ln')
            if i + XPRE < 18: x_load(i + XPRE)
            elif apre:
                for _ in range(2):
                    if acc_slots: load_frag()
            v = VV(i)
            e(f'v_lshlrev_b32 v{v}, 16, v{v+4}', f'v_and_b32 v{v+1}, 0xffff0000, v{v+4}', f'v_lshlrev_b32 v{v+2}, 16, v{v+5}', f'v_and_b32 v{v+3}, 0xffff0000, v{v+5}',
              f'v_lshlrev_b32 v{v+4}, 16, v{v+6}', f'v_and_b32 v{v+5}, 0xffff0000, v{v+6}', f'v_lshlrev_b32 v{v+6}, 16, v{v+7}', f'v_and_b32 v{v+7}, 0xffff0000, v{v+7}')
            accumulate(v, i == 0)
        stamp(True); stamp('ln')
        e.wait_all(vm=False, lg=True)
        e('s_barrier')
        e('v_lshlrev_b32 v26, 5, v17', f'v_add_u32 v26, {LDS_H}, v26')
        TB = [32, 48, 64]
        def tab_reads(i):
            t = TB[i % 3]
            for (o, base) in ((0, TG), (8, TS)):
                e(f'ds_read_b128 v[{t+o}:{t+o+3}], v26 offset:{base + 128*i}', f'ds_read_b128 v[{t+o+4}:{t+o+7}], v26 offset:{base + 128*i + 16}', lg=('t', i))
        tab_reads(0); tab_reads(1)
        stats()
        e(f'v_mov_b32 v{NM}, v{M}', f'v_mov_b32 v{NM+1}, v{M}', f'v_mov_b32 v82, v{Q}', f'v_mov_b32 v83, v{Q}')
        stamp(True); stamp('ln')
        for i in range(18):
            if i + 2 < 18: tab_reads(i + 2)
            e.wait_lg(('t', i))
            v, t = VV(i), TB[i % 3]
            for k in range(0, 8, 2): e(f'v_pk_mul_f32 {pr(t+k)}, {pr(t+k)}, {pr(82)}')
            for k in range(0, 8, 2): e(f'v_pk_fma_f32 {pr(t+8+k)}, {pr(t+k)}, {pr(NM)}, {pr(t+8+k)} neg_lo:[1,0,0] neg_hi:[1,0,0]')
            for k in range(0, 8, 2): e(f'v_pk_fma_f32 {pr(v+k)}, {pr(v+k)}, {pr(t+k)}, {pr(t+8+k)}')
            accumulate(v, i == 0)
        stamp('ln')
        stats()
        e(f'v_mul_f32 v{M}, v{M}, v{Q}', f'v_mov_b32 v{M+1}, v{M}')
        stamp(True); stamp('ln')
        e('v_lshrrev_b32 v26, 1, v17', 'v_lshlrev_b32 v26, 10, v26', 'v_and_b32 v27, 1, v17', 'v_lshlrev_b32 v27, 9, v27', 'v_add_u32 v26, v26, v27',
          'v_lshlrev_b32 v27, 4, v16', 'v_add_u32 v26, v26, v27', f's_lshr_b32 s33, s{S_W}, 1', 's_mul_i32 s33, s33, 36864', f's_and_b32 s34, s{S_W}, 1', 's_lshl_b32 s34, s34, 8',
          's_add_u32 s33, s33, s34', f's_add_u32 s33, s33, {LDS_Y}', 'v_add_u32 v26, s33, v26')
        for i in list(range(6, 18)) + list(range(6)):
            v = VV(i)
            for k in range(0, 8, 2): e(f'v_pk_fma_f32 {pr(v+k)}, {pr(v+k)}, {pr(Q)}, {pr(M)} neg_lo:[0,0,1] neg_hi:[0,0,1]')
            for k in range(4): e(f'v_cvt_pk_bf16_f32 v{32+4*(i&1)+k}, v{v+2*k}, v{v+2*k+1}')
            e(f'ds_write_b128 v26, v[{32+4*(i&1)}:{35+4*(i&1)}] offset:{2048*i}', lg='yw')
            if i >= 6 and not apre:
                load_frag(); load_frag()
            if i % 6 == 5: e('s_waitcnt lgkmcnt(2)')
        e.lg = ['yw']
        while acc_slots: load_frag()
        stamp('ln')

    def bias_reads(addr, off):
        return [f'ds_read_b128 {rng(V_BIAS+4*c,4)}, v{addr} offset:{off+16*c}' for c in range(4)]
    def gelu_group(xs, hp):
        ts = [V_T + j for j in range(4)]
        out = []
        if pkgelu:
            P = lambda b: f'v[{b}:{b+1}]'
            for j in (0, 2): out.append(f'v_pk_mul_f32 {P(ts[j])}, {P(xs[j])}, {P(xs[j])}')
            for j in (0, 2): out.append(f'v_pk_fma_f32 {P(ts[j])}, {P(ts[j])}, s[{S_C1}:{S_C1+1}], v[14:15]')
            for j in (0, 2): out.append(f'v_pk_mul_f32 {P(ts[j])}, {P(xs[j])}, {P(ts[j])}')
            for j in range(4): out.append(f'v_exp_f32 v{ts[j]}, v{ts[j]}')
            for j in (0, 2): out.append(f'v_pk_add_f32 {P(ts[j])}, {P(ts[j])}, s[{S_ONE}:{S_ONE+1}]')
            for j in range(4): out.append(f'v_rcp_f32 v{ts[j]}, v{ts[j]}')
            for j in (0, 2): out.append(f'v_pk_mul_f32 {P(ts[j])}, {P(xs[j])}, {P(ts[j])}')
        else:
            for j in range(4): out.append(f'v_mul_f32 v{ts[j]}, v{xs[j]}, v{xs[j]}')
            for j in range(4): out.append(f'v_fmamk_f32 v{ts[j]}, v{ts[j]}, {f2h(C1)}, v{V_C0}')
            for j in range(4): out.append(f'v_mul_f32 v{ts[j]}, v{xs[j]}, v{ts[j]}')
            for j in range(4): out.append(f'v_exp_f32 v{ts[j]}, v{ts[j]}')
            for j in range(4): out.append(f'v_add_f32 v{ts[j]}, 1.0, v{ts[j]}')
            for j in range(4): out.append(f'v_rcp_f32 v{ts[j]}, v{ts[j]}')
            for j in range(4): out.append(f'v_mul_f32 v{ts[j]}, v{xs[j]}, v{ts[j]}')
        out.append(f'v_cvt_pk_bf16_f32 v{hp}, v{ts[0]}, v{ts[1]}')
        out.append(f'v_cvt_pk_bf16_f32 v{hp+1}, v{ts[2]}, v{ts[3]}')
        return out
    def gelu_half(x0, step, addr, off):
        out = []
        for g in range(2):
            out += gelu_group([x0 + 8*step + 4*g + j for j in range(4)], V_HP + 4 * step + 2 * g)
        out.append(f'ds_write_b128 v{addr}, {rng(V_HP + 4*step, 4)} offset:{off}')
        return out
    def gelu_tile(buf, i):
        out = []
        for sl in range(2):
            for step in range(2):
                out += gelu_half(acc(buf, sl), step, V_HW + sl, ((2*i if i < 3 else 0) + step) * 1024)
        return out
    def store_stream(x0s):
        out = []
        for x0, sreg in x0s:
            for q in range(2):
                hp = V_HP + 4 * q
                for j in range(4):
                    out.append(f'v_cvt_pk_bf16_f32 v{hp+j}, v{x0+8*q+2*j}, v{x0+8*q+2*j+1}')
                if not nostore: out.append(f'buffer_store_dwordx4 {rng(hp,4)}, v{V_L16}, s[{S_WS}:{S_WS+3}], s{sreg} offen offset:{q*1024}{store_mod}')
        return out
    def xchg_send(x0, addr, offs):
        return [f'ds_write_b128 v{addr}, {rng(x0+4*k,4)} offset:{offs[k]}' for k in range(4)]
    def xchg_recv(dst, addr, offs):
        out = []
        for k in range(4):
            out.append(('xr', f'ds_read_b128 {rng(V_TMP,4)}, v{addr} offset:{offs[k]}'))
            out.append(('gap', 4))
            out.append(('xw', None))
            for j in range(4): out.append(f'v_add_f32 v{dst+4*k+j}, v{dst+4*k+j}, v{V_TMP+j}')
        return out

    fr = dict(n=0)
    def emit_fill(x):
        if isinstance(x, tuple):
            if x[0] == 'xr': e(x[1], lg='xr')
            elif x[0] == 'xw': e.wait_lg('xr')
            return 4
        e(x, vm='st', lg='hw')
        return cost(x)
    def unit(accs, slots, fill, first_c, jit=None, pre=None, pre_at=None, delay=3, barriers=None, fill_until=None, per_step=1):
        ns = len(accs); nm = len(slots) * ns
        fill = list(fill)
        total = sum(4 if isinstance(x, tuple) else cost(x) for x in fill)
        span = (fill_until if fill_until else nm) - delay
        done, gap, hold = 0, 0, 0
        DJ = 4
        barriers = dict(barriers or {})
        pend = [i for i in range(len(slots)) if jit and slots[i] in jit]
        limit = [min([b for b in barriers] + [len(slots)]) if barriers else len(slots)]
        def issue_jit(upto):
            while pend and pend[0] <= upto and pend[0] < limit[0]:
                i = pend.pop(0)
                setup, off = jit[slots[i]]
                if setup is not None:
                    for sl in range(ns): e(f'v_add_u32 v{V_RD+sl}, s{setup}, v{V_BASE+sl}')
                for sl in range(ns):
                    e(f'ds_read_b128 {yreg(sl*36+slots[i])}, v{V_RD+sl} offset:{off}', lg=('y', i))
        def do_barrier(i):
            barriers.pop(i)()
            limit[0] = min([b for b in barriers] + [len(slots)]) if barriers else len(slots)
            issue_jit(i + DJ - 1)
        if 0 in barriers: do_barrier(0)
        else: issue_jit(DJ - 1)
        n0 = fr['n']
        for i, slot in enumerate(slots):
            if i in barriers:
                while fill and fill_until and i * ns >= fill_until: emit_fill(fill.pop(0))
                do_barrier(i)
            n = fr['n']
            if i % G == 0: e.wait_vm(('f', min(n + G - 1, n0 + len(slots) - 1)))
            e.wait_lg(('y', i))
            r = slot_of[n]
            for sl in range(ns):
                a = accs[sl]
                c = (first_c if (i == 0 and first_c is not None) else rng(a, 16))
                e(f'v_mfma_f32_32x32x16_bf16 {rng(a,16)}, {r}, {yreg(sl*36+slot)}, {c}')
                gap += 1
                if sl == ns - 1:
                    if r[0] == 'v': free.append(r)
                    for _ in range(per_step):
                        if free: load_frag()
                    issue_jit(i + DJ)
                    if pre and i == pre_at:
                        for x in pre: e(x, lg='bias')
                if gap >= delay:
                    target = total * min(1.0, (gap - delay + 1) / span)
                    while fill and done < target and gap >= hold:
                        x = fill.pop(0)
                        if isinstance(x, tuple) and x[0] == 'gap':
                            hold = gap + x[1]; continue
                        done += emit_fill(x)
            fr['n'] = n + 1
        for x in fill:
            if not (isinstance(x, tuple) and x[0] == 'gap'): emit_fill(x)

    bias = rng(V_BIAS, 16)
    if pkgelu:
        e(f's_mov_b32 s{S_C1}, {f2h(C1)}', f's_mov_b32 s{S_C1+1}, {f2h(C1)}', f's_mov_b32 s{S_ONE}, 1.0', f's_mov_b32 s{S_ONE+1}, 1.0', f'v_mov_b32 v14, {f2h(C0)}', f'v_mov_b32 v15, {f2h(C0)}')
    def ybar(c):
        def f():
            e.wait_vm(('y', c))
            stamp(True)
            if c == 0: e.wait_all(vm=False, lg=True)
            e('s_barrier')
            if c == 0:
                stamp(); stamp('ln')
                for x in bias_reads(V_BRH, 0): e(x, lg='bias')
        return f
    def ldsbar():
        e.wait_all(vm=False, lg=True)
        e('s_barrier')
    XO1 = [0, 1024, 36864, 36864 + 1024]
    XO2 = [0, 1024, 2048, 3072]
    unit([V_SH, acc(1, 1)], list(range(18)), [], bias, jit={i: (None, i * 1024) for i in range(18)},
         barriers=({0: ybar(0)} if ln2 else {0: ybar(0), 6: ybar(1), 12: ybar(2)}), pre=bias_reads(V_BR, 0), pre_at=12, per_step=(2 if (ln2 and apre) else 1))
    stamp()
    e.wait_lg('bias')
    unit([acc(0, 0), acc(0, 1)], list(range(36)), xchg_send(acc(1, 1), V_XW, XO1), bias,
         jit={i: (S_O18B if i == 18 else None, (i - 18) * 1024) for i in range(18, 36)}, delay=8, fill_until=24,
         pre=bias_reads(V_BR, 128), pre_at=30)
    ldsbar()
    stamp()
    unit([acc(1, 0), acc(1, 1)], list(range(36)), gelu_tile(0, 0) + xchg_recv(V_SH, V_XR, XO1), bias, pre=bias_reads(V_BR, 256), pre_at=30)
    e.wait_lg('bias')
    unit([acc(0, 0), acc(0, 1)], list(range(36)), gelu_half(V_SH, 0, V_HWH, 0) + gelu_tile(1, 1), bias, pre=bias_reads(V_BR, 384), pre_at=30)
    e.wait_lg('bias')
    unit([acc(1, 0), acc(1, 1)], list(range(36)), gelu_half(V_SH, 1, V_HWH, 1024) + gelu_tile(0, 2), bias)
    for k in range(extra_ring):
        free.append(rng(V_BIAS + 4 * k, 4))
        load_frag()
    e(f'v_add_u32 v{V_HW}, s{S_HW3}, v{V_HW}', f'v_add_u32 v{V_HW+1}, s{S_HW3}, v{V_HW+1}')
    e(f'v_add_u32 v{V_BASE}, {LDS_H}, v{V_BASE}', f'v_add_u32 v{V_BASE+1}, {LDS_H}, v{V_BASE+1}')
    e(f's_lshl_b32 s37, s{S_W}, 12', f'v_add_u32 v{V_XW}, s37, v{V_L16}', f's_xor_b32 s37, s37, 4096', f'v_add_u32 v{V_XR}, s37, v{V_L16}')
    ldsbar()
    stamp()
    jit2 = {}
    for i in range(36):
        if i < 14: jit2[i] = (S_O14A if i == 0 else None, i * 1024)
        elif i < 28: jit2[i] = (S_O14B if i == 14 else None, (i - 14) * 1024)
        elif i < 32: jit2[i] = (S_O28A if i == 28 else None, (i - 28) * 1024)
        else: jit2[i] = (S_O28B if i == 32 else None, (i - 32) * 1024)
    unit([acc(0, 0), acc(0, 1)], list(range(36)), gelu_tile(1, 3), '0', jit=jit2, barriers={28: ldsbar}, fill_until=56)
    stamp()
    adv = [f's_add_u32 s{S_P0}, s{S_P0}, 4096', f's_add_u32 s{S_P1}, s{S_P1}, 4096']
    unit([V_SH, acc(1, 1)], list(range(14)) + list(range(28, 32)), store_stream([(acc(0, 0), S_P0), (acc(0, 1), S_P1)]), '0', delay=4)
    for x in adv: e(x)
    unit([acc(0, 0), acc(0, 1)], list(range(36)), xchg_send(acc(1, 1), V_XW, XO2), '0', delay=8, fill_until=24)
    ldsbar()
    unit([acc(1, 0), acc(1, 1)], list(range(36)),
         store_stream([(acc(0, 0), S_P0), (acc(0, 1), S_P1)]) + xchg_recv(V_SH, V_XR, XO2) + store_stream([(V_SH, S_PH)]), '0')
    for x in adv: e(x)
    unit([acc(0, 0), acc(0, 1)], list(range(36)), store_stream([(acc(1, 0), S_P0), (acc(1, 1), S_P1)]), '0', fill_until=((18 - 2 * extra_ring + 4) if fuse else None))
    for x in adv: e(x)
    if not fuse:
        for x in store_stream([(acc(0, 0), S_P0), (acc(0, 1), S_P1)]): e(x, vm='st')
    else:
        assert all(t != 'st' for t in e.vm), e.vm
        stamp(pstamps)
        e(f's_load_dwordx2 s[4:5], s[0:1], {Lo.KA["b2"]}', f's_load_dwordx2 s[6:7], s[0:1], {Lo.KA["out"]}')
        e('s_lshl_b32 s33, s17, 3', 's_add_u32 s46, s33, s16', 's_lshl_b32 s46, s46, 7', f's_add_u32 s46, s46, {Lo.FLG:#x}')
        e('s_lshl_b32 s33, s33, 7', f's_add_u32 s47, s33, {Lo.FLG:#x}')
        e('v_mov_b32 v15, 0')
        def raise_flag(word):
            e('v_mov_b32 v14, 1', 's_mov_b64 exec, 1')
            e(f'buffer_store_dword v14, v15, s[{S_WS}:{S_WS+3}], s46 offen offset:{4*word} sc1')
            e('s_mov_b64 exec, -1')
        e('s_barrier')
        e(f's_cmp_lg_u32 s{S_W}, 0', 's_cbranch_scc1 K4_NF1')
        sv = list(e.vm)
        raise_flag(0)
        e.label('K4_NF1')
        e.vm = sv
        e(f's_lshl_b32 s33, s{S_W}, 12', f's_add_u32 s33, s33, {LDS_Y + 16384}', f'v_add_u32 v2, s33, v{V_L16}')
        for sl in range(2):
            for q in range(2):
                hp = V_HP + 4 * q
                for j in range(4): e(f'v_cvt_pk_bf16_f32 v{hp+j}, v{acc(0, sl)+8*q+2*j}, v{acc(0, sl)+8*q+2*j+1}')
                e(f'ds_write_b128 v2, {rng(hp,4)} offset:{sl*2048 + q*1024}', lg='d')
        e(f'v_mov_b32 v14, 0', f'v_mov_b32 v173, {LDS_Y + 8192}', 'ds_write_b32 v173, v14')
        e('s_waitcnt lgkmcnt(0)', 's_barrier')
        e.lg = []
        e.srd(S_B1, 4, 5, Lo.D * 2)
        e.srd(36, 6, 7, Lo.L * Lo.D * 2)
        e('s_mul_i32 s34, s17, 589824', f's_add_u32 s34, s34, {Lo.PART:#x}')
        e(f'v_lshrrev_b32 v2, 4, v{V_L16}', 'v_and_b32 v3, 31, v2', 'v_lshrrev_b32 v4, 5, v2', 'v_lshlrev_b32 v4, 4, v4')
        e('v_lshlrev_b32 v172, 3, v3')
        e('v_mul_u32_u24 v3, 1152, v3', f'v_lshlrev_b32 v5, 3, v{V_L16}')
        PB, XB, AC = 16, 112, 160
        SI = [48, 49, 50]
        def early_idx(dst, i_expr):
            e('s_mul_i32 s40, s16, 7', *i_expr)
            e('s_lshr_b32 s41, s40, 2', 's_mul_hi_u32 s42, s41, 0x55555556', 's_add_u32 s42, s42, s41', 's_add_u32 s43, s41, 4',
              's_cmp_ge_u32 s41, 12', 's_cselect_b32 s42, s43, s42')
            e('s_lshl_b32 s42, s42, 2', 's_and_b32 s40, s40, 3', f's_add_u32 s{dst}, s42, s40')
        def late_idx(dst, i):
            e('s_lshl_b32 s40, s16, 1', f's_add_u32 s40, s40, {i}', 's_lshr_b32 s41, s40, 2', 's_lshl_b32 s41, s41, 4', 's_add_u32 s41, s41, 12',
              's_and_b32 s40, s40, 3', f's_add_u32 s{dst}, s41, s40')
        def side_loads(k):
            i = SI[k]
            e(f's_lshr_b32 s42, s{i}, 2', 's_lshl_b32 s42, s42, 6', f's_and_b32 s43, s{i}, 1', 's_lshl_b32 s43, s43, 5', 's_add_u32 s42, s42, s43')
            e(f's_bfe_u32 s43, s{i}, 0x10001', 's_lshl_b32 s43, s43, 5', 's_lshl_b32 s44, s17, 6', 's_add_u32 s43, s43, s44', 's_mul_i32 s43, s43, 1152', 's_add_u32 s43, s43, s42')
            e(f'v_add_u32 v{6+2*k}, s42, v4')
            e(f'v_add_u32 v{7+2*k}, v3, v4', f'v_add_u32 v{7+2*k}, s43, v{7+2*k}')
            e(f's_mov_b32 s45, {Lo.MODB + 5*576*2:#x}')
            if not ln2:
                e(f's_mov_b32 s44, {Lo.X2:#x}')
                e(f'buffer_load_dwordx4 v[{XB+12*k}:{XB+12*k+3}], v{7+2*k}, s[{S_WS}:{S_WS+3}], s44 offen', vm=('p', k))
            else:
                e(f'v_lshlrev_b32 v12, 11, v{6+2*k}', f's_bfe_u32 s44, s{i}, 0x10001', 's_lshl_b32 s44, s44, 5', 's_lshl_b32 s51, s17, 6', 's_add_u32 s44, s44, s51',
                  's_lshl_b32 s44, s44, 3', f's_add_u32 s44, s44, {Lo.AT4:#x}', 'v_add_u32 v12, v12, v172', 'v_add_u32 v13, 16384, v12')
                e(f'buffer_load_dwordx2 v[{XB+12*k}:{XB+12*k+1}], v12, s[{S_WS}:{S_WS+3}], s44 offen', vm=('p', k))
                e(f'buffer_load_dwordx2 v[{XB+12*k+2}:{XB+12*k+3}], v13, s[{S_WS}:{S_WS+3}], s44 offen', vm=('p', k))
            e(f'buffer_load_dwordx4 v[{XB+12*k+4}:{XB+12*k+7}], v{6+2*k}, s[{S_WS}:{S_WS+3}], s45 offen', vm=('p', k))
            e(f'buffer_load_dwordx4 v[{XB+12*k+8}:{XB+12*k+11}], v{6+2*k}, s[{S_B1}:{S_B1+3}], 0 offen', vm=('p', k))
        def poll(word, lab):
            e('s_mov_b64 exec, 0xff', f's_mov_b32 s35, {spin}')
            e.label(lab)
            e(f'buffer_load_dword v14, v5, s[{S_WS}:{S_WS+3}], s47 offen offset:{4*word} sc1')
            e('s_waitcnt vmcnt(0)')
            e('v_cmp_ne_u32 vcc, 1, v14')
            e('s_sub_u32 s35, s35, 1', 's_cmp_eq_u32 s35, 0', f's_cbranch_scc1 {lab}_X', 's_nop 0', f's_cbranch_vccnz {lab}')
            e.label(lab + '_X')
            e('s_mov_b64 exec, -1')
            e.vm = []; e.hist = []
        def frag_loads(k):
            e(f's_lshl_b32 s41, s{SI[k]}, 10', 's_add_u32 s41, s41, s34')
            for sp in range(8):
                e(f'buffer_load_dwordx4 v[{PB+32*k+4*sp}:{PB+32*k+4*sp+3}], v{V_L16}, s[{S_WS}:{S_WS+3}], s41 offen sc1', vm=('p', k))
                if sp < 7: e('s_add_u32 s41, s41, 73728')
            side_loads(k)
        def frag_finish(k):
            e.wait_vm(('p', k))
            for sp in range(8):
                for m in range(4):
                    r = PB + 32*k + 4*sp + m
                    if sp == 0: e(f'v_lshlrev_b32 v{AC+2*m}, 16, v{r}', f'v_and_b32 v{AC+2*m+1}, 0xffff0000, v{r}')
                    elif dot2: e(f'v_dot2c_f32_bf16 v{AC+2*m}, v{r}, v174', f'v_dot2c_f32_bf16 v{AC+2*m+1}, v{r}, v175')
                    else:
                        e(f'v_lshlrev_b32 v12, 16, v{r}', f'v_and_b32 v13, 0xffff0000, v{r}')
                        e(f'v_add_f32 v{AC+2*m}, v{AC+2*m}, v12', f'v_add_f32 v{AC+2*m+1}, v{AC+2*m+1}, v13')
            for j in range(4): e(f'v_permlane32_swap_b32 v{AC+j}, v{AC+4+j}')
            for m in range(4):
                for h in range(2):
                    kk = AC + 2*m + h
                    un = (lambda dst, src: f'v_lshlrev_b32 v{dst}, 16, v{src}') if h == 0 else (lambda dst, src: f'v_and_b32 v{dst}, 0xffff0000, v{src}')
                    e(un(12, XB+12*k+8+m), un(13, XB+12*k+4+m), un(14, XB+12*k+m))
                    e(f'v_add_f32 v{kk}, v{kk}, v12', f'v_fma_f32 v{kk}, v{kk}, v13, v14')
            for m in range(4): e(f'v_cvt_pk_bf16_f32 v{AC+8+m}, v{AC+2*m}, v{AC+2*m+1}')
            e(f'buffer_store_dwordx4 v[{AC+8}:{AC+11}], v{7+2*k}, s[36:39], 0 offen', vm='o')
        if dot2: e('v_mov_b32 v174, 0x3f80', 'v_mov_b32 v175, 0x3f800000')
        e(f's_cmp_eq_u32 s{S_W}, 3', 's_cbranch_scc1 K4_W3')
        base_state = (list(e.vm), list(e.hist))
        early_idx(SI[0], [f's_add_u32 s40, s40, s{S_W}'])
        early_idx(SI[1], [f's_add_u32 s40, s40, s{S_W}', 's_add_u32 s40, s40, 3'])
        early_idx(SI[2], ['s_add_u32 s40, s40, 6'])
        stamp('tail')
        e(f's_cmp_lg_u32 s{S_W}, 0', 's_cbranch_scc1 K4_RELAY')
        poll(0, 'K4_POLL1')
        e('v_mov_b32 v14, 1', 'ds_write_b32 v173, v14')
        e('s_branch K4_GO')
        e.label('K4_RELAY')
        e(f's_mov_b32 s35, {spin * 16}')
        e.label('K4_RELAY_L')
        e('ds_read_b32 v14, v173', 's_waitcnt lgkmcnt(0)', 'v_cmp_ne_u32 vcc, 1, v14', 's_sub_u32 s35, s35, 1', 's_cmp_eq_u32 s35, 0', 's_cbranch_scc1 K4_GO', 's_nop 0', 's_cbranch_vccnz K4_RELAY_L')
        e.label('K4_GO')
        e.vm = []; e.hist = []; e.lg = []
        stamp('tail')
        frag_loads(0); frag_loads(1)
        e(f's_cmp_lg_u32 s{S_W}, 0', 's_cbranch_scc1 K4_TWO')
        sv = (list(e.vm), list(e.hist))
        frag_loads(2)
        e.wait_vm(('p', 0)); stamp('tail')
        frag_finish(0); frag_finish(1); frag_finish(2)
        e('s_branch K4_RDONE')
        e.label('K4_TWO')
        e.vm, e.hist = list(sv[0]), list(sv[1])
        frag_finish(0); frag_finish(1)
        e('s_branch K4_RDONE')
        e.label('K4_W3')
        e.vm, e.hist = list(base_state[0]), []
        e(f'v_add_u32 v2, {LDS_Y + 16384}, v{V_L16}')
        e('s_lshl_b32 s33, s17, 3', 's_add_u32 s33, s33, s16', 's_mul_i32 s33, s33, 73728', f's_add_u32 s33, s33, {Lo.PART + 3*4096:#x}')
        for wv in range(4):
            for sl in range(2):
                for q in range(2):
                    n = wv * 4 + sl * 2 + q
                    e(f'ds_read_b128 v[{16+4*n}:{19+4*n}], v2 offset:{wv*4096 + sl*2048 + q*1024}', lg=('d', n))
            if wv == 1: e.wait_lg(('d', 3))
        for wv in range(4):
            for sl in range(2):
                for q in range(2):
                    n = wv * 4 + sl * 2 + q
                    e.wait_lg(('d', n))
                    u = sl ^ (wv & 1)
                    e(f'buffer_store_dwordx4 v[{16+4*n}:{19+4*n}], v{V_L16}, s[{S_WS}:{S_WS+3}], s33 offen offset:{u*2048 + q*1024}{store_mod}', vm='st')
            if wv < 3: e('s_add_u32 s33, s33, 16384')
        late_idx(SI[0], 0); late_idx(SI[1], 1)
        e('s_waitcnt vmcnt(0)')
        e.vm = []
        raise_flag(1)
        poll(1, 'K4_POLL2')
        frag_loads(0); frag_loads(1)
        frag_finish(0); frag_finish(1)
        e.label('K4_RDONE')
    if stamps:
        stamp(pstamps)
        e('s_waitcnt vmcnt(0)')
        stamp(pstamps)
        e(f's_load_dwordx2 s[4:5], s[0:1], {Lo.KA["dbg"]}', 's_waitcnt lgkmcnt(0)')
        e.srd(12, 4, 5, 256)
        e('s_cmp_ge_u32 s2, 2', 's_cbranch_scc1 K4_END')
        e('s_lshl_b32 s40, s2, 2', f's_add_u32 s40, s40, s{S_W}', 's_lshl_b32 s40, s40, 5', 'v_mov_b32 v12, s40')
        for i in range(1, nst[0]):
            e(f's_sub_u32 s41, s{56+2*i}, s56', 'v_mov_b32 v13, s41', f'buffer_store_dword v13, v12, s[12:15], 0 offen offset:{4*(i-1)}', vm='dbg')
    e.label('K4_END')
    e('s_endpgm')
    return e

if __name__ == '__main__':
    import asmlib
    e = build()
    errs = asmlib.check(e.lines)
    print('instructions', len(e.lines), 'nops', e.nops, 'hazard errors', len(errs))
    for x in errs[:20]: print(x)
```
